```python
import torch

def _softmax(x, axis=-1):
    return torch.softmax(x, dim=axis)

def _gelu(x):
    return torch.nn.functional.gelu(x, approximate='tanh')

def _silu(x):
    return torch.nn.functional.silu(x)

def _sigmoid(x):
    return torch.sigmoid(x)

def _layernorm(x, axis=-1, eps=1e-05):
    m = x.mean(dim=axis, keepdim=True)
    v = x.var(dim=axis, keepdim=True, unbiased=False)
    return (x - m) / torch.sqrt(v + eps)

def _scatter_add(tgt, idx, src, axis=0):
    return tgt.clone().index_add_(axis, idx, src)

def _segment_sum(src, seg, n):
    out = torch.zeros((n,) + src.shape[1:], dtype=src.dtype)
    return out.index_add_(0, seg, src)

def _pad(x, pw):
    flat = tuple((v for pair in reversed(pw) for v in pair))
    return torch.nn.functional.pad(x, flat)
kernel_name = 'parallel_sum__softmax_full_mha__mixer_gmlp__prompt'

def setup_inputs():

    _w = lambda a: (lambda t: t.to(torch.bfloat16) if t.is_floating_point() else t)(torch.as_tensor(a))

    def _A_setup():
        B, S, D = (1, 2048, 448)
        return {'x': _w((lambda *s: torch.randn(*s, dtype=torch.bfloat16) * 0.05)(B, S, D)), 'wqkv': _w((lambda *s: torch.randn(*s, dtype=torch.bfloat16) * 0.2)(D, 3 * D)), 'wo': _w((lambda *s: torch.randn(*s, dtype=torch.bfloat16) * 0.1)(D, D))}
    _A_in = _A_setup()

    def _B_setup():
        B, S, D, F = (1, 2048, 448, 1792)
        Fh = F // 2
        return {'x': _w((lambda *s: torch.randn(*s, dtype=torch.bfloat16) * 0.05)(B, S, D)), 'w_in': _w((lambda *s: torch.randn(*s, dtype=torch.bfloat16) * 0.4)(D, 2 * Fh)), 'w_sp': _w(0.01 * (lambda *s: torch.randn(*s, dtype=torch.bfloat16) * 0.4)(S, S)), 'b_sp': _w(1.0 + 0.01 * (lambda *s: torch.randn(*s, dtype=torch.bfloat16) * 0.2)(S)), 'w_out': _w((lambda *s: torch.randn(*s, dtype=torch.bfloat16) * 0.2)(Fh, D))}
    _B_in = _B_setup()
    return {'A_x': _A_in['x'], 'A_wqkv': _A_in['wqkv'], 'A_wo': _A_in['wo'], 'B_x': _B_in['x'], 'B_w_in': _B_in['w_in'], 'B_w_sp': _B_in['w_sp'], 'B_b_sp': _B_in['b_sp'], 'B_w_out': _B_in['w_out']}

def reference(A_x, A_wqkv, A_wo, B_x, B_w_in, B_w_sp, B_b_sp, B_w_out):

    def _A_ref(x, wqkv, wo):
        B, S, D = x.shape
        H = 16
        Dh = D // H
        qkv = (lambda x, *d: x.permute(*d))((x @ wqkv).reshape(B, S, 3, H, Dh), 2, 0, 3, 1, 4)
        q, k, v = (qkv[0], qkv[1], qkv[2])
        scale = Dh ** (-0.5)
        scores = torch.einsum('bhqd,bhkd->bhqk', q, k) * scale
        p = _softmax(scores, axis=-1)
        o = torch.einsum('bhqk,bhkd->bhqd', p, v)
        return (lambda x, *d: x.permute(*d))(o, 0, 2, 1, 3).reshape(B, S, D) @ wo

    def _B_ref(x, w_in, w_sp, b_sp, w_out):
        B, S, D = x.shape
        F = w_in.shape[-1]
        Fh = F // 2
        z = _gelu(torch.einsum('bsd,df->bsf', x, w_in))
        z1 = z[..., :Fh].clone()
        z2 = _layernorm(z[..., Fh:], axis=-1)
        g = torch.einsum('ts,bsf->btf', w_sp, z2) + b_sp[None, :, None]
        return torch.einsum('bsf,fd->bsd', z1 * g, w_out)
    x = A_x
    xn = _layernorm(x, axis=-1)
    return x + _A_ref(xn, A_wqkv, A_wo) + _B_ref(xn, B_w_in, B_w_sp, B_b_sp, B_w_out)
```

```python
import struct
MB = 1 << 20
QF, KF, VF, Z1, Z2F, HF, OF, WF, ST = 0, 2*MB, 4*MB, 6*MB, 10*MB, 14*MB, 18*MB, 20*MB, 22*MB
WS_BYTES = 24*MB
def f32(x): return "0x%08x" % struct.unpack("<I", struct.pack("<f", x))[0]
class Asm:
    def __init__(self): self.L = []
    def __call__(self, s):
        for ln in s.strip("\n").split("\n"):
            ln = ln.strip()
            if ln: self.L.append(("" if ln.endswith(":") else "  ") + ln)
    def c(self, s): self.L.append("  ; " + s)
    def text(self): return "\n".join(self.L) + "\n"
def vr(b, n=4): return f"v[{b}:{b+n-1}]"
def sr(b, n=2): return f"s[{b}:{b+n-1}]"
def srd(a, d, lo, nbytes):
    a(f"s_mov_b32 s{d}, s{lo}\ns_and_b32 s{d+1}, s{lo+1}, 0xffff\ns_mov_b32 s{d+2}, {nbytes}\ns_mov_b32 s{d+3}, 0x00020000")
def kdesc(name, vgpr, sgpr):
    acc = (vgpr + 3)//4*4
    return f""".p2align 6
.amdhsa_kernel {name}
  .amdhsa_next_free_vgpr {vgpr}
  .amdhsa_next_free_sgpr {sgpr}
  .amdhsa_accum_offset {acc}
  .amdhsa_group_segment_fixed_size 0
  .amdhsa_float_denorm_mode_32 3
  .amdhsa_kernarg_size 88
  .amdhsa_user_sgpr_count 2
  .amdhsa_user_sgpr_kernarg_segment_ptr 1
  .amdhsa_system_sgpr_workgroup_id_x 1
.end_amdhsa_kernel
"""
def khead(a, name):
    a.L += [f".globl {name}", ".p2align 8", f".type {name},@function", f"{name}:"]
```

```python
from common import *
import math
SLOT = 14336
MISC = 0
SB = 6144
PST = MISC
CSB = MISC + 2048
MU = MISC + 4096
RS = MISC + 4608
T_Z2, T_Z1, T_Q, T_K, T_V = 0, 1, 2, 3, 4

def k1_table():
    tab = [[] for _ in range(16)]
    even = [s for s in range(16) if (s & 1) == 0]
    odd = [s for s in range(16) if (s & 1) == 1]
    nonz2 = [11, 15]
    for p, s in enumerate(sorted(even, key=lambda s: (s & 7, s >> 3))): tab[s].append((T_Z2, p))
    for p, s in enumerate(sorted([s for s in odd if s not in nonz2], key=lambda s: (s & 7, s >> 3))): tab[s].append((T_Z2, 8 + p))
    cap = {s: (2 if s not in nonz2 else 3) for s in range(16)}
    items = []
    for t in (T_Q, T_K, T_V):
        for p in range(7): items.append((t, p, min(7, int(round((p*64+32-28)/56.0)))))
    def place(t, p, pref):
        for d in range(0, 9):
            for x in (pref - d, pref + d):
                if 0 <= x < 8:
                    for s in (x, x + 8):
                        if cap[s] > 0:
                            cap[s] -= 1; tab[s].append((t, p)); return
        raise Exception("no room")
    for t, p, pref in items: place(t, p, pref)
    for p in range(13):
        want = 0 if p < 8 else 1
        c = [s for s in range(16) if cap[s] > 0 and (s & 1) == want] or [s for s in range(16) if cap[s] > 0]
        s = c[0]; cap[s] -= 1; tab[s].append((T_Z1, p))
    assert all(v == 0 for v in cap.values())
    words = []
    for s in range(16):
        e = list(tab[s])
        row = []
        for (t, p) in e:
            cb = {T_Z1: 0, T_Z2: 1792, T_Q: 0, T_K: 896, T_V: 1792}[t] + p*128
            row.append(t | (p << 8) | (cb << 16))
        if s in nonz2:
            b = nonz2.index(s)
            row.append(T_Z1 | (b << 4) | (13 << 8) | ((13*128) << 16))
        else:
            row.append(0xFFFFFFFF)
        words.append(row)
    return words

def gen_k1(a):
    XA, ACC, WR, Z2H, BP, AP, T = 16, 128, 144, 172, 188, 192, 196
    C1, C2, ONE, RSP, L16, NH = 244, 246, 248, 250, 252, 253
    khead(a, "k1_kernel")
    a(f"""
    s_cmp_ge_u32 s2, 256
    s_cbranch_scc1 K1_END
    s_load_dwordx4 s[4:7], s[0:1], 0
    s_load_dwordx2 s[8:9], s[0:1], 32
    s_load_dwordx4 s[12:15], s[0:1], 72
    s_getpc_b64 s[44:45]
    K1_PC:
    s_and_b32 s33, s2, 15
    s_lshl_b32 s46, s33, 4
    s_add_u32 s44, s44, s46
    s_addc_u32 s45, s45, 0
    s_add_u32 s44, s44, K1_TAB-K1_PC
    s_addc_u32 s45, s45, 0
    s_load_dwordx4 s[28:31], s[44:45], 0
    v_lshrrev_b32 v1, 6, v0
    s_lshr_b32 s32, s2, 4
    v_readfirstlane_b32 s3, v1
    v_and_b32 v1, 63, v0
    v_and_b32 v2, 31, v0
    v_bfe_u32 v3, v0, 5, 1
    s_lshr_b32 s34, s3, 2
    s_and_b32 s35, s3, 3
    s_lshl_b32 s36, s32, 2
    s_add_u32 s36, s36, s35
    """)
    a.c("x DMA voffsets: vE=v14, vO=v15")
    a(f"""
    v_lshrrev_b32 v8, 3, v1
    v_lshrrev_b32 v9, 4, v1
    v_and_b32 v10, 7, v1
    v_xor_b32 v11, v10, v9
    v_lshlrev_b32 v11, 4, v11
    v_lshl_add_u32 v14, v8, 7, v11
    v_xor_b32 v15, 64, v14
    v_and_b32 v9, 1, v9
    v_lshlrev_b32 v9, 2, v9
    v_xor_b32 v10, v10, v9
    v_lshlrev_b32 v10, 4, v10
    v_mul_u32_u24 v4, 2688, v8
    v_add_u32 v4, v4, v10
    v_mul_u32_u24 v5, 3584, v8
    v_add_u32 v5, v5, v10
    s_lshl_b32 s46, s32, 7
    s_lshl_b32 s47, s3, 4
    s_add_u32 s46, s46, s47
    s_mul_i32 s40, s46, 896
    s_mul_i32 s47, s3, {SLOT}
    s_add_u32 s47, s47, {SB}
    s_waitcnt lgkmcnt(0)
    """)
    srd(a, 16, 4, 2048*448*2)
    srd(a, 24, 14, WS_BYTES)
    a("s_mov_b32 m0, s47")
    for i in range(14):
        if i % 4 == 0 and i > 0:
            a("s_add_u32 m0, m0, 4096\ns_add_u32 s40, s40, 4096")
        a(f"buffer_load_dwordx4 v{14 + (i & 1)}, s[16:19], s40 offen offset:{(i % 4)*1024} lds")
    a.c("nblk")
    a(f"""
    s_cmp_eq_u32 s31, -1
    s_cselect_b32 s37, 6, 7
    """)
    a.c("T0: W q0..q2, 42 instrs, waves 0..6 six each")
    a(f"""
    s_cmp_eq_u32 s3, 7
    s_cbranch_scc1 K1_T0_DONE
    s_mov_b32 s48, 0
    s_mul_i32 s49, s3, 6
    s_mov_b32 s50, 6
    s_call_b64 s[42:43], K1_DMA
    K1_T0_DONE:
    """)
    a.c("x frag read addresses into XA[4j]")
    a(f"""
    v_mul_u32_u24 v8, 7, v2
    s_mul_i32 s46, s35, {2*SLOT}
    s_add_u32 s46, s46, {SB}
    """)
    for cg in range(7):
        b = XA + 16*cg
        a(f"""
        v_add_u32 v9, {cg}, v8
        v_bfe_u32 v10, v9, 1, 3
        v_xor_b32 v10, v10, v3
        v_lshlrev_b32 v10, 4, v10
        v_lshl_add_u32 v9, v9, 7, s46
        v_add_u32 v{b}, v9, v10
        v_xor_b32 v{b+4}, 32, v{b}
        v_xor_b32 v{b+8}, 64, v{b}
        v_xor_b32 v{b+12}, 0x60, v{b}
        """)
    a.c("tr lane offset v7 (b=0): (8h+r')*128 + ((2g+(c'>>1)) ^ ((r'>>1)<<2))*16 + (c'&1)*8")
    a(f"""
    v_bfe_u32 v8, v1, 2, 2
    v_lshl_add_u32 v9, v3, 3, v8
    v_lshlrev_b32 v9, 7, v9
    v_bfe_u32 v10, v1, 4, 1
    v_lshlrev_b32 v10, 1, v10
    v_bfe_u32 v11, v1, 1, 1
    v_add_u32 v10, v10, v11
    v_lshrrev_b32 v8, 1, v8
    v_lshlrev_b32 v8, 2, v8
    v_xor_b32 v10, v10, v8
    v_lshl_add_u32 v9, v10, 4, v9
    v_and_b32 v10, 1, v1
    v_lshl_add_u32 v7, v10, 3, v9
    v_lshlrev_b32 v{L16}, 4, v1
    v_mov_b32 v{C1}, {f32(-2*math.log2(math.e)*math.sqrt(2/math.pi))}
    v_mov_b32 v{C1+1}, {f32(-2*math.log2(math.e)*math.sqrt(2/math.pi))}
    v_mov_b32 v{C2}, {f32(-2*math.log2(math.e)*math.sqrt(2/math.pi)*0.044715)}
    v_mov_b32 v{C2+1}, {f32(-2*math.log2(math.e)*math.sqrt(2/math.pi)*0.044715)}
    v_mov_b32 v{ONE}, 1.0
    v_mov_b32 v{ONE+1}, 1.0
    v_cvt_f32_u32 v{NH}, v3
    v_subrev_f32 v{NH}, 1.0, v{NH}
    v_mov_b32 v{BP+2}, 0
    v_mov_b32 v{BP+3}, 0
    v_mov_b32 v{AP+2}, 0
    v_mov_b32 v{AP+3}, 0
    s_mov_b32 s51, 0x3f803f80
    """)
    for i in range(8): a(f"v_mov_b32 v{T+i}, 0")
    a("s_waitcnt vmcnt(0)\ns_barrier")
    for j in range(28):
        a(f"ds_read_b128 {vr(XA+4*j)}, v{XA+4*j}")
        if j == 14:
            pass
    def stats(j0):
        for j in range(j0, j0+14):
            for i in range(4):
                a(f"v_dot2c_f32_bf16 v{T+i}, s51, v{XA+4*j+i}")
                a(f"v_dot2c_f32_bf16 v{T+4+i}, v{XA+4*j+i}, v{XA+4*j+i}")
        a(f"""
        s_nop 2
        v_add_f32 v{T}, v{T}, v{T+1}
        v_add_f32 v{T+2}, v{T+2}, v{T+3}
        v_add_f32 v{T+4}, v{T+4}, v{T+5}
        v_add_f32 v{T+6}, v{T+6}, v{T+7}
        v_add_f32 v{T}, v{T}, v{T+2}
        v_add_f32 v{T+1}, v{T+4}, v{T+6}
        """)
    a(f"""
    s_lshl_b32 s46, s35, 9
    v_lshl_add_u32 v8, v1, 3, s46
    s_cmp_eq_u32 s34, 1
    s_cbranch_scc1 K1_BPRE
    """)
    a.c("group A: stats on slots 0..13")
    a("s_waitcnt lgkmcnt(14)")
    stats(0)
    a(f"""
    ds_write_b64 v8, v[{T}:{T+1}] offset:{PST}
    s_waitcnt lgkmcnt(0)
    s_barrier
    s_mov_b32 s38, 0
    s_branch K1_LOOP
    K1_BPRE:
    s_waitcnt lgkmcnt(0)
    s_barrier
    """)
    a.c("group B: q3 share, stats, finalize")
    a(f"""
    s_mov_b32 s48, 3
    s_lshl_b32 s49, s35, 2
    s_cmp_eq_u32 s35, 3
    s_cselect_b32 s50, 2, 4
    s_call_b64 s[42:43], K1_DMA
    ds_read_b64 v[{T+8}:{T+9}], v8 offset:{PST}
    """)
    stats(14)
    a(f"""
    s_waitcnt lgkmcnt(0)
    v_add_f32 v{T}, v{T}, v{T+8}
    v_add_f32 v{T+1}, v{T+1}, v{T+9}
    v_mov_b32 v{T+2}, v{T}
    v_mov_b32 v{T+3}, v{T+1}
    s_nop 1
    v_permlane32_swap_b32 v{T}, v{T+2}
    v_permlane32_swap_b32 v{T+1}, v{T+3}
    s_nop 1
    v_add_f32 v{T}, v{T}, v{T+2}
    v_add_f32 v{T+1}, v{T+1}, v{T+3}
    v_mul_f32 v{T}, {f32(1/448)}, v{T}
    v_mul_f32 v{T+1}, {f32(1/448)}, v{T+1}
    v_fma_f32 v{T+1}, -v{T}, v{T}, v{T+1}
    v_max_f32 v{T+1}, 0, v{T+1}
    v_add_f32 v{T+1}, {f32(1e-5)}, v{T+1}
    v_rsq_f32 v{T+1}, v{T+1}
    s_lshl_b32 s46, s35, 7
    v_lshl_add_u32 v8, v2, 2, s46
    ds_write_b32 v8, v{T} offset:{MU}
    ds_write_b32 v8, v{T+1} offset:{RS}
    """)
    a.c("K pad store for head=slot")
    a(f"""
    s_lshl_b32 s46, s33, 6
    s_add_u32 s46, s46, s36
    s_lshl_b32 s46, s46, 11
    s_add_u32 s46, s46, {KF + 1024 + 512 + 8}
    v_lshlrev_b32 v9, 4, v2
    v_mov_b32 v10, 0x3f803f80
    v_mov_b32 v11, 0x3f80
    s_waitcnt vmcnt(0)
    buffer_store_dwordx2 v[10:11], v9, s[24:27], s46 offen
    s_barrier
    """)
    a.c("B issues q4..q7 (one segment each)")
    a(f"""
    s_mov_b32 s48, s3
    s_mov_b32 s49, 0
    s_mov_b32 s50, 14
    s_call_b64 s[42:43], K1_DMA
    s_mov_b32 s38, -1
    s_branch K1_CS
    """)
    a("K1_LOOP:")
    a.c("MFMA(k): k=s38. desc -> s52 ; half b -> s53")
    def getdesc(kreg, dst):
        a(f"""
        s_lshr_b32 s46, {kreg}, 1
        s_mov_b32 {dst}, s28
        s_cmp_eq_u32 s46, 1
        s_cselect_b32 {dst}, s29, {dst}
        s_cmp_eq_u32 s46, 2
        s_cselect_b32 {dst}, s30, {dst}
        s_cmp_eq_u32 s46, 3
        s_cselect_b32 {dst}, s31, {dst}
        """)
    def halfbits(kreg, desc, dst):
        a(f"""
        s_and_b32 {dst}, {kreg}, 1
        s_bfe_u32 s47, {desc}, 0x10004
        s_cmp_eq_u32 {kreg}, 6
        s_cselect_b32 {dst}, s47, {dst}
        """)
    def slotbase(qreg, dst):
        a(f"""
        s_add_u32 {dst}, {qreg}, 8
        s_sub_u32 s47, {dst}, 11
        s_cmp_ge_u32 {dst}, 11
        s_cselect_b32 {dst}, s47, {dst}
        s_sub_u32 s47, {dst}, 11
        s_cmp_ge_u32 {dst}, 11
        s_cselect_b32 {dst}, s47, {dst}
        s_mul_i32 {dst}, {dst}, {SLOT}
        s_add_u32 {dst}, {dst}, {SB}
        """)
    getdesc("s38", "s52")
    halfbits("s38", "s52", "s53")
    a(f"""
    s_lshl_b32 s54, s53, 6
    v_xor_b32 v12, s54, v7
    s_lshr_b32 s55, s38, 1
    s_lshl_b32 s55, s55, 2
    """)
    for s in range(4):
        slotbase("s55", "s56")
        a(f"v_add_u32 v{8+s}, s56, v12")
        if s < 3: a("s_add_u32 s55, s55, 1")
    a(f"""
    s_and_b32 s57, s52, 7
    s_cmp_eq_u32 s57, {T_V}
    s_cbranch_scc1 K1_MF_D
    """)
    def rd(j):
        w = WR + 4*(j % 7); s = j // 7; off = (j % 7)*2048
        a(f"ds_read_b64_tr_b16 v[{w}:{w+1}], v{8+s} offset:{off}")
        a(f"ds_read_b64_tr_b16 v[{w+2}:{w+3}], v{8+s} offset:{off+512}")
    def mf(orient, tag):
        for j in range(6): rd(j)
        for j in range(28):
            if j == 14:
                a(f"s_cmp_lg_u32 s38, 0\ns_cbranch_scc1 K1_NB{tag}\ns_barrier\nK1_NB{tag}:")
            n_out = min(5, 27 - j)
            a(f"s_waitcnt lgkmcnt({2*n_out})")
            w = vr(WR + 4*(j % 7)); x = vr(XA + 4*j)
            c = "0" if j == 0 else vr(ACC, 16)
            if orient == 'T': a(f"v_mfma_f32_32x32x16_bf16 {vr(ACC,16)}, {w}, {x}, {c}")
            else: a(f"v_mfma_f32_32x32x16_bf16 {vr(ACC,16)}, {x}, {w}, {c}")
            if j + 6 < 28: rd(j + 6)
    mf('T', 'T')
    a("s_branch K1_MF_DONE\nK1_MF_D:")
    mf('D', 'D')
    a("K1_MF_DONE:\ns_waitcnt vmcnt(0)\ns_barrier")
    a.c("EPI(k): signal / DMA issue points")
    a(f"""
    s_cmp_lg_u32 s38, 3
    s_cbranch_scc1 K1_NOSIG
    s_cmp_lg_u32 s3, 4
    s_cbranch_scc1 K1_NOSIG
    s_cmp_lg_u32 s37, 6
    s_cbranch_scc1 K1_NOSIG
    s_lshl_b32 s46, s32, 2
    v_mov_b32 v8, s46
    v_mov_b32 v9, 1
    s_mov_b64 exec, 1
    global_atomic_add v8, v9, s[12:13] sc1
    s_mov_b64 exec, -1
    K1_NOSIG:
    """)
    a.c("read cs partials, mu, rs")
    a(f"""
    s_and_b32 s46, s38, 1
    s_lshl_b32 s46, s46, 10
    v_lshl_add_u32 v8, v2, 5, s46
    ds_read_b128 {vr(T)}, v8 offset:{CSB}
    ds_read_b128 {vr(T+4)}, v8 offset:{CSB+16}
    s_lshl_b32 s46, s35, 7
    v_lshl_add_u32 v9, v2, 2, s46
    ds_read_b32 v{T+8}, v9 offset:{MU}
    ds_read_b32 v{RSP}, v9 offset:{RS}
    """)
    a.c("DMA issue: k=0: A waves0-2 q8..10 ; k=1: B q11..14 (q>=12 only if nblk==7) ; k=3: B q15 split (if nblk==7)")
    a(f"""
    s_mov_b32 s49, 0
    s_mov_b32 s50, 14
    s_cmp_eq_u32 s38, 0
    s_cbranch_scc0 K1_D1
    s_add_u32 s48, s35, 8
    s_cmp_lt_u32 s35, 3
    s_cbranch_scc1 K1_DGO
    s_branch K1_DNO
    K1_D1:
    s_cmp_eq_u32 s38, 1
    s_cbranch_scc0 K1_D3
    s_add_u32 s48, s35, 11
    s_cmp_eq_u32 s35, 0
    s_cbranch_scc1 K1_DGO
    s_cmp_eq_u32 s37, 7
    s_cbranch_scc1 K1_DGO
    s_branch K1_DNO
    K1_D3:
    s_cmp_eq_u32 s38, 3
    s_cbranch_scc0 K1_DNO
    s_cmp_eq_u32 s37, 7
    s_cbranch_scc0 K1_DNO
    s_mov_b32 s48, 15
    s_lshl_b32 s49, s35, 2
    s_cmp_eq_u32 s35, 3
    s_cselect_b32 s50, 2, 4
    K1_DGO:
    s_call_b64 s[42:43], K1_DMA
    K1_DNO:
    s_waitcnt lgkmcnt(0)
    v_add_f32 v{T}, v{T}, v{T+1}
    v_add_f32 v{T+2}, v{T+2}, v{T+3}
    v_add_f32 v{T+4}, v{T+4}, v{T+5}
    v_add_f32 v{T+6}, v{T+6}, v{T+7}
    v_add_f32 v{T}, v{T}, v{T+2}
    v_add_f32 v{T+4}, v{T+4}, v{T+6}
    v_add_f32 v{T}, v{T}, v{T+4}
    v_mul_f32 v{T+8}, v{T+8}, v{NH}
    v_cvt_pk_bf16_f32 v{AP+1}, v{T}, v{T}
    v_cvt_pk_bf16_f32 v{BP}, v{T+8}, v{T+8}
    v_lshlrev_b32 v{T+1}, 16, v{AP+1}
    v_lshlrev_b32 v{T+2}, 16, v{BP}
    v_sub_f32 v{T+1}, v{T}, v{T+1}
    v_sub_f32 v{T+2}, v{T+8}, v{T+2}
    v_cvt_pk_bf16_f32 v{AP}, v{T}, v{T+1}
    v_cvt_pk_bf16_f32 v{BP+1}, v{T+2}, 0
    s_bfe_u32 s58, s52, 0x80008
    s_lshl_b32 s58, s58, 1
    s_add_u32 s58, s58, s53
    s_cmp_eq_u32 s57, {T_V}
    s_cbranch_scc1 K1_EV
    v_mfma_f32_32x32x16_bf16 {vr(ACC,16)}, {vr(AP)}, {vr(BP)}, {vr(ACC,16)}
    s_cmp_ge_u32 s57, {T_Q}
    s_cbranch_scc1 K1_EQK
    """)
    a.c("---- Z1/Z2: gelu. s58 = block index in section")
    a(f"v_mov_b32 v{RSP+1}, v{RSP}\ns_nop 7\ns_nop 3")
    Y, U = T, T+16
    for i in range(0, 16, 2):
        a(f"v_pk_mul_f32 v[{Y+i}:{Y+i+1}], v[{ACC+i}:{ACC+i+1}], v[{RSP}:{RSP+1}]")
    for i in range(0, 16, 2):
        a(f"v_pk_mul_f32 v[{U+i}:{U+i+1}], v[{Y+i}:{Y+i+1}], v[{Y+i}:{Y+i+1}]")
    for i in range(0, 16, 2):
        a(f"v_pk_fma_f32 v[{U+i}:{U+i+1}], v[{U+i}:{U+i+1}], v[{C2}:{C2+1}], v[{C1}:{C1+1}]")
    for i in range(0, 16, 2):
        a(f"v_pk_mul_f32 v[{U+i}:{U+i+1}], v[{U+i}:{U+i+1}], v[{Y+i}:{Y+i+1}]")
    for i in range(16): a(f"v_exp_f32 v{U+i}, v{U+i}")
    for i in range(0, 16, 2):
        a(f"v_pk_add_f32 v[{U+i}:{U+i+1}], v[{U+i}:{U+i+1}], v[{ONE}:{ONE+1}]")
    for i in range(16): a(f"v_rcp_f32 v{U+i}, v{U+i}")
    a(f"s_cmp_eq_u32 s57, {T_Z2}\ns_cbranch_scc1 K1_EZ2")
    for i in range(0, 16, 2):
        a(f"v_pk_mul_f32 v[{Y+i}:{Y+i+1}], v[{Y+i}:{Y+i+1}], v[{U+i}:{U+i+1}]")
    for i in range(8): a(f"v_cvt_pk_bf16_f32 v{U+i}, v{Y+2*i}, v{Y+2*i+1}")
    a(f"""
    s_mul_i32 s46, s36, 28
    s_add_u32 s46, s46, s58
    s_lshl_b32 s46, s46, 11
    s_add_u32 s46, s46, {Z1}
    buffer_store_dwordx4 {vr(U)}, v{L16}, s[24:27], s46 offen
    buffer_store_dwordx4 {vr(U+4)}, v{L16}, s[24:27], s46 offen offset:1024
    s_branch K1_EDONE
    K1_EZ2:
    """)
    for i in range(0, 16, 2):
        a(f"v_pk_mul_f32 v[{Z2H+i}:{Z2H+i+1}], v[{Y+i}:{Y+i+1}], v[{U+i}:{U+i+1}]")
    a(f"v_pk_mul_f32 v[{U}:{U+1}], v[{Z2H}:{Z2H+1}], v[{Z2H}:{Z2H+1}]")
    a(f"v_pk_add_f32 v[{Y}:{Y+1}], v[{Z2H}:{Z2H+1}], v[{Z2H+2}:{Z2H+3}]")
    for i in range(2, 16, 2):
        a(f"v_pk_fma_f32 v[{U}:{U+1}], v[{Z2H+i}:{Z2H+i+1}], v[{Z2H+i}:{Z2H+i+1}], v[{U}:{U+1}]")
        if i >= 4: a(f"v_pk_add_f32 v[{Y}:{Y+1}], v[{Y}:{Y+1}], v[{Z2H+i}:{Z2H+i+1}]")
    a(f"""
    v_add_f32 v{Y}, v{Y}, v{Y+1}
    v_add_f32 v{Y+1}, v{U}, v{U+1}
    v_mov_b32 v{Y+2}, v{Y}
    v_mov_b32 v{Y+3}, v{Y+1}
    s_nop 1
    v_permlane32_swap_b32 v{Y}, v{Y+2}
    v_permlane32_swap_b32 v{Y+1}, v{Y+3}
    s_nop 1
    v_add_f32 v{Y}, v{Y}, v{Y+2}
    v_add_f32 v{Y+1}, v{Y+1}, v{Y+3}
    s_mov_b32 s59, s58
    s_mul_i32 s46, s32, 28
    s_add_u32 s46, s46, s58
    s_lshl_b32 s46, s46, 10
    s_lshl_b32 s47, s35, 8
    s_add_u32 s46, s46, s47
    s_add_u32 s46, s46, {ST}
    v_lshlrev_b32 v8, 3, v2
    s_mov_b32 exec_hi, 0
    buffer_store_dwordx2 v[{Y}:{Y+1}], v8, s[24:27], s46 offen sc0 sc1
    s_mov_b32 exec_hi, -1
    s_branch K1_EDONE
    """)
    a.c("---- Q/K")
    a(f"""
    K1_EQK:
    s_cmp_eq_u32 s57, {T_Q}
    s_cselect_b32 s46, {f32(28**-0.5*math.log2(math.e))}, 1.0
    s_cselect_b32 s47, {QF}, {KF}
    v_mul_f32 v{RSP}, s46, v{RSP}
    v_mov_b32 v{RSP+1}, v{RSP}
    s_lshl_b32 s46, s36, 11
    s_add_u32 s47, s47, s46
    s_lshl_b32 s46, s58, 3
    v_add_u32 v8, s46, v3
    v_lshlrev_b32 v9, 4, v2
    """)
    for g in range(4):
        a(f"""
        v_add_u32 v10, {2*g}, v8
        v_mul_u32_u24 v11, 147, v10
        v_lshrrev_b32 v11, 10, v11
        v_mul_u32_u24 v12, 7, v11
        v_sub_u32 v10, v10, v12
        v_lshl_add_u32 v11, v11, 17, v9
        v_lshrrev_b32 v12, 1, v10
        v_lshl_add_u32 v11, v12, 9, v11
        v_and_b32 v10, 1, v10
        v_lshl_add_u32 v{U+8+g}, v10, 3, v11
        """)
    for i in range(0, 16, 2):
        a(f"v_pk_mul_f32 v[{Y+i}:{Y+i+1}], v[{ACC+i}:{ACC+i+1}], v[{RSP}:{RSP+1}]")
    for i in range(8): a(f"v_cvt_pk_bf16_f32 v{U+i}, v{Y+2*i}, v{Y+2*i+1}")
    for g in range(4):
        a(f"buffer_store_dwordx2 v[{U+2*g}:{U+2*g+1}], v{U+8+g}, s[24:27], s47 offen")
    a("s_branch K1_EDONE")
    a.c("---- V")
    a(f"""
    K1_EV:
    v_mfma_f32_32x32x16_bf16 {vr(ACC,16)}, {vr(BP)}, {vr(AP)}, {vr(ACC,16)}
    s_lshl_b32 s46, s35, 7
    v_lshl_add_u32 v8, v3, 4, s46
    """)
    for g in range(4): a(f"ds_read_b128 {vr(U+4*g)}, v8 offset:{RS + 32*g}")
    a(f"""
    s_lshl_b32 s46, s58, 5
    v_add_u32 v10, s46, v2
    v_mul_u32_u24 v11, 2341, v10
    v_lshrrev_b32 v11, 16, v11
    v_mul_u32_u24 v12, 28, v11
    v_sub_u32 v10, v10, v12
    v_lshl_add_u32 v10, v3, 5, v10
    v_lshlrev_b32 v10, 4, v10
    v_lshl_add_u32 v10, v11, 17, v10
    s_lshl_b32 s46, s36, 11
    s_add_u32 s46, s46, {VF}
    s_waitcnt lgkmcnt(0)
    s_nop 3
    """)
    for i in range(0, 16, 2):
        a(f"v_pk_mul_f32 v[{Y+i}:{Y+i+1}], v[{ACC+i}:{ACC+i+1}], v[{U+i}:{U+i+1}]")
    for i in range(8): a(f"v_cvt_pk_bf16_f32 v{U+i}, v{Y+2*i}, v{Y+2*i+1}")
    a(f"""
    buffer_store_dwordx4 {vr(U)}, v10, s[24:27], s46 offen
    buffer_store_dwordx4 {vr(U+4)}, v10, s[24:27], s46 offen offset:1024
    K1_EDONE:
    """)
    a(f"""
    K1_CS:
    s_add_u32 s60, s38, 1
    s_cmp_ge_u32 s60, s37
    s_cbranch_scc1 K1_TAIL
    """)
    getdesc("s60", "s61")
    halfbits("s60", "s61", "s62")
    a(f"""
    s_lshl_b32 s62, s62, 6
    v_xor_b32 v12, s62, v7
    s_lshr_b32 s55, s60, 1
    s_lshl_b32 s55, s55, 2
    s_add_u32 s55, s55, s35
    """)
    slotbase("s55", "s56")
    a(f"v_add_u32 v8, s56, v12")
    for j in range(7):
        w = WR + 4*j
        a(f"ds_read_b64_tr_b16 v[{w}:{w+1}], v8 offset:{j*2048}")
        a(f"ds_read_b64_tr_b16 v[{w+2}:{w+3}], v8 offset:{j*2048+512}")
    for i in range(4): a(f"v_mov_b32 v{T+40+i}, 0")
    a(f"""
    s_and_b32 s46, s60, 1
    s_lshl_b32 s46, s46, 10
    s_lshl_b32 s47, s35, 3
    s_add_u32 s46, s46, s47
    v_lshl_add_u32 v9, v2, 5, s46
    v_lshl_add_u32 v9, v3, 2, v9
    """)
    for j in range(7):
        a(f"s_waitcnt lgkmcnt({2*(6-j)})")
        for i in range(4): a(f"v_dot2c_f32_bf16 v{T+40+i}, s51, v{WR+4*j+i}")
    a(f"""
    s_nop 2
    v_add_f32 v{T+40}, v{T+40}, v{T+41}
    v_add_f32 v{T+42}, v{T+42}, v{T+43}
    v_add_f32 v{T+40}, v{T+40}, v{T+42}
    ds_write_b32 v9, v{T+40} offset:{CSB}
    s_waitcnt lgkmcnt(0)
    s_barrier
    s_add_u32 s38, s38, 2
    s_cmp_lt_u32 s38, s37
    s_cbranch_scc1 K1_LOOP
    K1_TAIL:
    s_cmp_lg_u32 s37, 6
    s_cbranch_scc1 K1_END
    """)
    a.c("poll counter[rb] == 14")
    a(f"""
    s_lshl_b32 s46, s32, 2
    v_mov_b32 v8, s46
    K1_POLL:
    global_load_dword v9, v8, s[12:13] sc1
    s_waitcnt vmcnt(0)
    v_readfirstlane_b32 s46, v9
    s_cmp_ge_u32 s46, 14
    s_cbranch_scc1 K1_POLLED
    s_sleep 2
    s_branch K1_POLL
    K1_POLLED:
    s_mul_i32 s46, s32, 28
    s_lshl_b32 s46, s46, 10
    s_lshl_b32 s47, s35, 8
    s_add_u32 s46, s46, s47
    s_add_u32 s46, s46, {ST}
    v_mul_u32_u24 v8, 14336, v3
    v_lshl_add_u32 v8, v2, 3, v8
    """)
    for i in range(14):
        if i % 4 == 0 and i: a("s_add_u32 s46, s46, 4096")
        a(f"buffer_load_dwordx2 v[{T+2*i}:{T+2*i+1}], v8, s[24:27], s46 offen offset:{(i%4)*1024} sc0 sc1")
    a("s_waitcnt vmcnt(0)")
    for st in (7,):
        for i in range(7): a(f"v_pk_add_f32 v[{T+2*i}:{T+2*i+1}], v[{T+2*i}:{T+2*i+1}], v[{T+2*i+14}:{T+2*i+15}]")
    for i in range(1, 7): a(f"v_pk_add_f32 v[{T}:{T+1}], v[{T}:{T+1}], v[{T+2*i}:{T+2*i+1}]")
    a(f"""
    v_mov_b32 v{T+2}, v{T}
    v_mov_b32 v{T+3}, v{T+1}
    s_nop 1
    v_permlane32_swap_b32 v{T}, v{T+2}
    v_permlane32_swap_b32 v{T+1}, v{T+3}
    s_nop 1
    v_add_f32 v{T}, v{T}, v{T+2}
    v_add_f32 v{T+1}, v{T+1}, v{T+3}
    v_mul_f32 v{T}, {f32(1/896)}, v{T}
    v_mul_f32 v{T+1}, {f32(1/896)}, v{T+1}
    v_fma_f32 v{T+1}, -v{T}, v{T}, v{T+1}
    v_max_f32 v{T+1}, 0, v{T+1}
    v_add_f32 v{T+1}, {f32(1e-5)}, v{T+1}
    v_rsq_f32 v{T+2}, v{T+1}
    s_nop 0
    v_mul_f32 v{T+4}, v{T}, v{T+2}
    v_sub_f32 v{T+4}, 0, v{T+4}
    """)
    for i in range(16): a(f"v_fma_f32 v{Z2H+i}, v{Z2H+i}, v{T+2}, v{T+4}")
    for i in range(8): a(f"v_cvt_pk_bf16_f32 v{T+8+i}, v{Z2H+2*i}, v{Z2H+2*i+1}")
    a.c("transpose through LDS scratch (2KB per wave): [token][f] 64B rows")
    a(f"""
    s_lshl_b32 s46, s3, 11
    s_add_u32 s46, s46, {SB}
    v_lshl_add_u32 v8, v2, 6, s46
    v_lshl_add_u32 v8, v3, 3, v8
    """)
    for g in range(4): a(f"ds_write_b64 v8, v[{T+8+2*g}:{T+9+2*g}] offset:{16*g}")
    a(f"""
    v_bfe_u32 v9, v1, 2, 2
    v_lshl_add_u32 v9, v3, 3, v9
    v_lshlrev_b32 v9, 6, v9
    v_bfe_u32 v10, v1, 4, 1
    v_lshl_add_u32 v9, v10, 5, v9
    v_and_b32 v10, 3, v1
    v_lshl_add_u32 v9, v10, 3, v9
    v_add_u32 v9, s46, v9
    s_waitcnt lgkmcnt(0)
    ds_read_b64_tr_b16 v[{T}:{T+1}], v9
    ds_read_b64_tr_b16 v[{T+2}:{T+3}], v9 offset:256
    ds_read_b64_tr_b16 v[{T+4}:{T+5}], v9 offset:1024
    ds_read_b64_tr_b16 v[{T+6}:{T+7}], v9 offset:1280
    s_mul_i32 s46, s36, 56
    s_add_u32 s46, s46, s59
    s_lshl_b32 s46, s46, 10
    s_add_u32 s46, s46, {Z2F}
    s_add_u32 s47, s46, {28*1024}
    s_waitcnt lgkmcnt(0)
    buffer_store_dwordx4 {vr(T)}, v{L16}, s[24:27], s46 offen
    buffer_store_dwordx4 {vr(T+4)}, v{L16}, s[24:27], s47 offen
    K1_END:
    s_endpgm
    """)
    a("K1_DMA:")
    a(f"s_lshr_b32 s63, s48, 1\ns_and_b32 s63, s63, 6")
    getdesc("s63", "s64")
    slotbase("s48", "s65")
    a(f"""
    s_and_b32 s66, s64, 7
    s_cmp_ge_u32 s66, {T_Q}
    s_cselect_b32 s20, s6, s8
    s_cselect_b32 s21, s7, s9
    s_mov_b32 s22, {448*1792*2}
    s_cselect_b32 s22, {448*1344*2}, s22
    s_movk_i32 s41, {3584*8}
    s_cselect_b32 s41, {2688*8}, s41
    s_cselect_b64 vcc, -1, 0
    s_and_b32 s21, s21, 0xffff
    s_mov_b32 s23, 0x00020000
    v_cndmask_b32 v6, v5, v4, vcc
    s_and_b32 s66, s48, 3
    s_mul_i32 s66, s66, 14
    s_add_u32 s66, s66, s49
    s_mul_i32 s40, s66, s41
    s_lshr_b32 s66, s64, 16
    s_add_u32 s40, s40, s66
    s_lshl_b32 s66, s49, 10
    s_add_u32 m0, s65, s66
    K1_DMAL:
    s_sub_u32 s50, s50, 1
    buffer_load_dwordx4 v6, s[20:23], s40 offen lds
    s_add_u32 m0, m0, 1024
    s_add_u32 s40, s40, s41
    s_cmp_lg_u32 s50, 0
    s_cbranch_scc1 K1_DMAL
    s_setpc_b64 s[42:43]
    """)
    a.L.append(".p2align 4")
    a("K1_TAB:")
    for row in k1_table():
        a.L.append("  .long " + ", ".join("0x%08x" % w for w in row))
    return kdesc("k1_kernel", 254, 72)
if __name__ == "__main__":
    for s, r in enumerate(k1_table()): print(s, [(w & 7, (w >> 8) & 255, (w>>4)&1) if w != 0xFFFFFFFF else None for w in r])
```

```python
from common import *
import math
LAUNCH = "; @launch kernel=k2_kernel grid=(512,1,1) block=(256,1,1) lds=66560"
FLAG = 65536
BIG = 0x7ff00000

def gen_attn(a):
    QA, KA, VA, SA, SB_, P, O, T = 8, 16, 24, 32, 48, 64, 72, 96
    a.c("======== attention ========")
    a(f"""
    s_and_b32 s32, s2, 7
    s_lshl_b32 s32, s32, 1
    s_bfe_u32 s33, s2, 0x10003
    s_add_u32 s32, s32, s33
    s_lshr_b32 s33, s2, 4
    s_lshl_b32 s33, s33, 2
    s_add_u32 s33, s33, s3
    s_lshl_b32 s34, s32, 17
    s_lshl_b32 s35, s33, 11
    s_add_u32 s35, s35, s34
    s_lshl_b32 s36, s3, 11
    s_add_u32 s37, s34, s36
    s_add_u32 s37, s37, {KF}
    s_mov_b32 s44, 0x0fffffff
    s_mov_b32 s45, 0x0fffffff
    s_mov_b32 s50, 0
    s_waitcnt lgkmcnt(0)
    """)
    srd(a, 24, 14, WS_BYTES)
    a(f"""
    buffer_load_dwordx4 {vr(QA)}, v4, s[24:27], s35 offen
    buffer_load_dwordx4 {vr(QA+4)}, v4, s[24:27], s35 offen offset:1024
    """)
    a.c("V pad prefill + flag clear")
    a(f"""
    v_cmp_eq_u32 vcc, 28, v2
    v_mov_b32 v{T}, 0x3f803f80
    v_mov_b32 v{T+4}, 0
    v_cndmask_b32 v{T}, 0, v{T}, vcc
    v_mov_b32 v{T+5}, {FLAG}
    v_mov_b32 v{T+1}, v{T}
    v_mov_b32 v{T+2}, v{T}
    v_mov_b32 v{T+3}, v{T}
    v_add_u32 v5, s36, v4
    ds_write_b32 v{T+5}, v{T+4}
    s_not_b64 exec, s[44:45]
    """)
    for b in range(4):
        for j in range(2): a(f"ds_write_b128 v5, {vr(T)} offset:{b*16384 + 8192 + j*1024}")
    a("s_mov_b64 exec, -1")
    def dma(stage_soff, m0expr):
        a(f"""
        buffer_load_dwordx4 v4, s[24:27], {stage_soff} offen lds
        buffer_load_dwordx4 v4, s[24:27], {stage_soff} offen offset:1024 lds
        s_add_u32 m0, m0, 8192
        s_add_u32 s39, {stage_soff}, {VF-KF}
        s_mov_b64 exec, s[44:45]
        buffer_load_dwordx4 v4, s[24:27], s39 offen lds
        buffer_load_dwordx4 v4, s[24:27], s39 offen offset:1024 lds
        s_mov_b64 exec, -1
        """)
    a("AT_START:")
    a("s_mov_b32 s38, s37")
    for st in range(3):
        a(f"s_add_u32 m0, s36, {st*16384}")
        if st: a("s_add_u32 s38, s38, 8192")
        else: a("s_nop 0")
        dma("s38", None)
    a(f"""
    s_add_u32 s38, s38, 8192
    s_mov_b32 s40, {3*16384}
    s_mov_b32 s41, -1
    """)
    for i in range(16): a(f"v_mov_b32 v{O+i}, 0")
    for i in range(4): a(f"v_mov_b32 v{P+4+i}, 0\nv_mov_b32 v{VA+4+i}, 0")
    a(f"""
    v_mov_b32 v5, v4
    v_mov_b32 v6, v4
    s_waitcnt vmcnt(8) lgkmcnt(0)
    s_barrier
    ds_read_b128 {vr(KA)}, v4
    ds_read_b128 {vr(KA+4)}, v4 offset:1024
    s_cmp_lg_u32 s50, 0
    s_cbranch_scc1 AT_HAVEM
    """)
    a.c("zero the m slots (lanes h=1 regs 2,3 of frag1)")
    a(f"""
    s_mov_b32 exec_lo, 0
    v_mov_b32 v{QA+6}, 0
    v_mov_b32 v{QA+7}, 0
    s_mov_b32 exec_lo, -1
    s_waitcnt lgkmcnt(0)
    s_nop 1
    v_mfma_f32_32x32x16_bf16 {vr(SA,16)}, {vr(KA)}, {vr(QA)}, 0
    v_mfma_f32_32x32x16_bf16 {vr(SA,16)}, {vr(KA+4)}, {vr(QA+4)}, {vr(SA,16)}
    s_nop 15
    v_max3_f32 v{T}, v{SA}, v{SA+1}, v{SA+2}
    """)
    for i in range(3, 15, 2): a(f"v_max3_f32 v{T}, v{T}, v{SA+i}, v{SA+i+1}")
    a(f"""
    v_max_f32 v{T}, v{T}, v{SA+15}
    v_add_f32 v{T}, {f32(64.0)}, v{T}
    AT_SETM:
    v_mov_b32 v{T+1}, v{T}
    s_nop 1
    v_permlane32_swap_b32 v{T}, v{T+1}
    s_nop 1
    v_max_f32 v{T}, v{T}, v{T+1}
    v_sub_f32 v{T}, 0, v{T}
    v_cvt_pk_bf16_f32 v{T+1}, v{T}, v{T}
    v_lshlrev_b32 v{T+2}, 16, v{T+1}
    v_sub_f32 v{T+2}, v{T}, v{T+2}
    v_cvt_pk_bf16_f32 v{T+3}, v{T+2}, v{T+2}
    v_lshlrev_b32 v{T+4}, 16, v{T+3}
    v_sub_f32 v{T+4}, v{T+2}, v{T+4}
    s_mov_b32 exec_lo, 0
    v_cvt_pk_bf16_f32 v{QA+6}, v{T}, v{T+2}
    v_cvt_pk_bf16_f32 v{QA+7}, v{T+4}, 0
    s_mov_b32 exec_lo, -1
    s_cmp_eq_u32 s50, 1
    s_cbranch_scc0 AT_HAVEM
    s_mov_b32 s50, 2
    s_branch AT_START
    AT_HAVEM:
    s_waitcnt lgkmcnt(0)
    s_nop 1
    v_mfma_f32_32x32x16_bf16 {vr(SA,16)}, {vr(KA)}, {vr(QA)}, 0
    v_mfma_f32_32x32x16_bf16 {vr(SA,16)}, {vr(KA+4)}, {vr(QA+4)}, {vr(SA,16)}
    ds_read_b128 {vr(KA)}, v4 offset:2048
    ds_read_b128 {vr(KA+4)}, v4 offset:3072
    ds_read_b128 {vr(VA)}, v4 offset:8192
    s_nop 7
    s_waitcnt lgkmcnt(0)
    s_branch AT_P2
    """)
    def ex(S, lo, pd):
        for i in range(4): a(f"v_exp_f32 v{S+lo+i}, v{S+lo+i}")
        a(f"v_cvt_pk_bf16_f32 v{pd}, v{S+lo}, v{S+lo+1}")
        a(f"v_cvt_pk_bf16_f32 v{pd+1}, v{S+lo+2}, v{S+lo+3}")
    def it(pos):
        t = (pos + 2) % 4
        Sc, Sn = (SA, SB_) if t % 2 == 0 else (SB_, SA)
        cur = "v5" if pos < 2 else "v6"
        def addr(tile_rel, base):
            reg = "v5" if tile_rel < 4 else "v6"
            return reg, base + (tile_rel % 4)*2048
        i = pos + 2
        a(f"v_exp_f32 v{Sc}, v{Sc}\nv_exp_f32 v{Sc+1}, v{Sc+1}")
        a("s_waitcnt lgkmcnt(3)")
        a(f"v_mfma_f32_32x32x16_bf16 {vr(O,16)}, {vr(VA+4)}, {vr(P+4)}, {vr(O,16)}")
        r, o = addr(i, 8192 + 1024); a(f"ds_read_b128 {vr(VA+4)}, {r} offset:{o}")
        a(f"v_exp_f32 v{Sc+2}, v{Sc+2}\nv_exp_f32 v{Sc+3}, v{Sc+3}")
        a(f"v_cvt_pk_bf16_f32 v{P}, v{Sc}, v{Sc+1}\nv_cvt_pk_bf16_f32 v{P+1}, v{Sc+2}, v{Sc+3}")
        a(f"v_exp_f32 v{Sc+4}, v{Sc+4}\nv_exp_f32 v{Sc+5}, v{Sc+5}")
        a("s_waitcnt lgkmcnt(3)")
        a(f"v_mfma_f32_32x32x16_bf16 {vr(Sn,16)}, {vr(KA)}, {vr(QA)}, 0")
        r, o = addr(i+2, 0); a(f"ds_read_b128 {vr(KA)}, {r} offset:{o}")
        a(f"v_exp_f32 v{Sc+6}, v{Sc+6}\nv_exp_f32 v{Sc+7}, v{Sc+7}")
        a(f"v_cvt_pk_bf16_f32 v{P+2}, v{Sc+4}, v{Sc+5}\nv_cvt_pk_bf16_f32 v{P+3}, v{Sc+6}, v{Sc+7}")
        a(f"v_exp_f32 v{Sc+8}, v{Sc+8}\nv_exp_f32 v{Sc+9}, v{Sc+9}")
        a("s_waitcnt lgkmcnt(3)")
        a(f"v_mfma_f32_32x32x16_bf16 {vr(Sn,16)}, {vr(KA+4)}, {vr(QA+4)}, {vr(Sn,16)}")
        r, o = addr(i+2, 1024); a(f"ds_read_b128 {vr(KA+4)}, {r} offset:{o}")
        a(f"v_exp_f32 v{Sc+10}, v{Sc+10}\nv_exp_f32 v{Sc+11}, v{Sc+11}")
        a(f"v_cvt_pk_bf16_f32 v{P+4}, v{Sc+8}, v{Sc+9}\nv_cvt_pk_bf16_f32 v{P+5}, v{Sc+10}, v{Sc+11}")
        a(f"v_exp_f32 v{Sc+12}, v{Sc+12}\nv_exp_f32 v{Sc+13}, v{Sc+13}")
        a("s_waitcnt lgkmcnt(3)")
        a(f"v_mfma_f32_32x32x16_bf16 {vr(O,16)}, {vr(VA)}, {vr(P)}, {vr(O,16)}")
        r, o = addr(i+1, 8192); a(f"ds_read_b128 {vr(VA)}, {r} offset:{o}")
        a(f"v_exp_f32 v{Sc+14}, v{Sc+14}\nv_exp_f32 v{Sc+15}, v{Sc+15}")
        a(f"v_cvt_pk_bf16_f32 v{P+6}, v{Sc+12}, v{Sc+13}\nv_cvt_pk_bf16_f32 v{P+7}, v{Sc+14}, v{Sc+15}")
    a("AT_LOOP:")
    a.c("s41 = stage s ; v5=buf(s) v6=buf(s+1)")
    a(f"""
    s_add_u32 s41, s41, 1
    v_mov_b32 v5, v6
    v_add_u32 v6, 0x4000, v6
    v_and_b32 v6, 0xffff, v6
    s_cmp_lt_u32 s41, 13
    s_cselect_b32 s42, s38, {BIG}
    s_add_u32 m0, s36, s40
    s_add_u32 s38, s38, 8192
    s_add_u32 s40, s40, 0x4000
    s_and_b32 s40, s40, 0xffff
    s_waitcnt vmcnt(4)
    s_barrier
    """)
    dma("s42", None)
    it(0); it(1)
    a("s_cmp_eq_u32 s41, 15\ns_cbranch_scc1 AT_DONE\nAT_P2:")
    it(2); it(3)
    a("s_branch AT_LOOP\nAT_DONE:")
    a(f"""
    s_waitcnt lgkmcnt(0)
    v_mfma_f32_32x32x16_bf16 {vr(O,16)}, {vr(VA+4)}, {vr(P+4)}, {vr(O,16)}
    s_nop 15
    v_max3_f32 v{T}, |v{O}|, |v{O+1}|, |v{O+2}|
    """)
    for i in range(3, 15, 2): a(f"v_max3_f32 v{T}, v{T}, |v{O+i}|, |v{O+i+1}|")
    a.c("NaN-safe: sum of all times 0 ; l broadcast")
    a(f"""
    v_max_f32 v{T}, v{T}, |v{O+15}|
    v_add_f32 v{T+1}, v{O}, v{O+1}
    """)
    for i in range(2, 16): a(f"v_add_f32 v{T+1}, v{T+1}, v{O+i}")
    a(f"""
    v_mov_b32 v{T+2}, v{O+12}
    v_mov_b32 v{T+3}, v{O+12}
    v_fma_f32 v{T}, v{T+1}, 0, v{T}
    s_nop 0
    v_permlane32_swap_b32 v{T+2}, v{T+3}
    v_mov_b32 v{T+5}, {FLAG}
    v_mov_b32 v{T+6}, 1
    v_cmp_ngt_f32 vcc, {f32(2.0**120)}, v{T}
    s_mov_b64 s[46:47], vcc
    v_cmp_nlt_f32 vcc, {f32(2.0**-110)}, v{T+3}
    s_or_b64 s[46:47], vcc, s[46:47]
    s_cbranch_scc0 AT_OK1
    ds_write_b32 v{T+5}, v{T+6}
    AT_OK1:
    s_waitcnt vmcnt(0) lgkmcnt(0)
    s_barrier
    ds_read_b32 v{T+6}, v{T+5}
    v_rcp_f32 v{T+3}, v{T+3}
    s_waitcnt lgkmcnt(0)
    v_readfirstlane_b32 s46, v{T+6}
    s_cmp_eq_u32 s46, 0
    s_cbranch_scc1 AT_STORE
    s_cmp_eq_u32 s50, 0
    s_cbranch_scc1 AT_SLOW
    AT_STORE:
    """)
    for i in range(16): a(f"v_mul_f32 v{O+i}, v{O+i}, v{T+3}")
    for i in range(8): a(f"v_cvt_pk_bf16_f32 v{P+i}, v{O+2*i}, v{O+2*i+1}")
    a.c("k4 = 7*head + 2g + h ; addr = (tile*28 + (k4>>2))*1024 + ((k4>>1)&1)*512 + r*16 + (k4&1)*8")
    a(f"""
    s_mul_i32 s46, s33, {84*1024}
    s_add_u32 s46, s46, {HF}
    s_mul_i32 s47, s32, 7
    v_add_u32 v{T}, s47, v3
    v_lshlrev_b32 v{T+1}, 4, v2
    """)
    for g in range(4):
        a(f"""
        v_add_u32 v{T+2}, {2*g}, v{T}
        v_lshrrev_b32 v{T+4}, 1, v{T+2}
        v_lshl_add_u32 v{T+4}, v{T+4}, 9, v{T+1}
        v_and_b32 v{T+2}, 1, v{T+2}
        v_lshl_add_u32 v{T+8+g}, v{T+2}, 3, v{T+4}
        """)
        if g == 3: a("s_mov_b32 exec_hi, 0")
        a(f"buffer_store_dwordx2 v[{P+2*g}:{P+2*g+1}], v{T+8+g}, s[24:27], s46 offen")
    a("s_endpgm")
    a.c("---- slow path: true max over all keys")
    a(f"""
    AT_SLOW:
    s_mov_b32 s50, 1
    s_mov_b32 exec_lo, 0
    v_mov_b32 v{QA+6}, 0
    v_mov_b32 v{QA+7}, 0
    s_mov_b32 exec_lo, -1
    v_mov_b32 v{T}, 0xff800000
    s_mov_b32 s38, s37
    s_mov_b32 s41, 0
    AT_SL1:
    s_barrier
    s_mov_b32 m0, s36
    s_nop 0
    buffer_load_dwordx4 v4, s[24:27], s38 offen lds
    buffer_load_dwordx4 v4, s[24:27], s38 offen offset:1024 lds
    s_add_u32 s38, s38, 8192
    s_waitcnt vmcnt(0)
    s_barrier
    v_mov_b32 v5, v4
    s_mov_b32 s42, 0
    AT_SL2:
    ds_read_b128 {vr(KA)}, v5
    ds_read_b128 {vr(KA+4)}, v5 offset:1024
    v_add_u32 v5, 0x800, v5
    s_waitcnt lgkmcnt(0)
    v_mfma_f32_32x32x16_bf16 {vr(SA,16)}, {vr(KA)}, {vr(QA)}, 0
    v_mfma_f32_32x32x16_bf16 {vr(SA,16)}, {vr(KA+4)}, {vr(QA+4)}, {vr(SA,16)}
    s_nop 15
    """)
    for i in range(0, 16, 2): a(f"v_max3_f32 v{T}, v{T}, v{SA+i}, v{SA+i+1}")
    a(f"""
    s_add_u32 s42, s42, 1
    s_cmp_lt_u32 s42, 4
    s_cbranch_scc1 AT_SL2
    s_add_u32 s41, s41, 1
    s_cmp_lt_u32 s41, 16
    s_cbranch_scc1 AT_SL1
    s_barrier
    s_branch AT_SETM
    """)

def gen_gemm(a):
    ZA, BF, ACC, Z1R, AD = 16, 144, 160, 224, 240
    BV = 248
    a.c("======== spatial GEMM ========")
    a(f"""
    GM_START:
    s_and_b32 s32, s2, 7
    s_sub_u32 s33, s2, 256
    s_lshr_b32 s33, s33, 3
    s_lshr_b32 s34, s32, 1
    s_lshl_b32 s34, s34, 3
    s_bitcmp1_b32 s32, 0
    s_cbranch_scc1 GM_ODD
    s_lshr_b32 s35, s33, 2
    s_and_b32 s36, s33, 3
    s_branch GM_GO
    GM_ODD:
    s_cmp_ge_u32 s33, 24
    s_cbranch_scc1 TR_START
    s_mul_i32 s35, s33, 43
    s_lshr_b32 s35, s35, 7
    s_mul_i32 s36, s35, 3
    s_sub_u32 s36, s33, s36
    s_add_u32 s36, s36, 4
    GM_GO:
    s_add_u32 s35, s35, s34
    s_lshr_b32 s37, s3, 1
    s_and_b32 s38, s3, 1
    """)
    a.c("s35=tt64 s36=ft s37=kh s38=fh ; s39 = fb0")
    a(f"""
    s_lshl_b32 s39, s36, 2
    s_lshl_b32 s46, s38, 1
    s_add_u32 s39, s39, s46
    s_mul_i32 s40, s37, {4*28}
    s_add_u32 s40, s40, s39
    s_lshl_b32 s40, s40, 10
    s_add_u32 s40, s40, {Z2F}
    s_lshl_b32 s41, s35, 18
    s_lshl_b32 s46, s3, 2
    v_lshrrev_b32 v5, 4, v1
    v_add_u32 v5, s46, v5
    v_and_b32 v6, 15, v1
    v_xor_b32 v6, v6, v5
    v_lshlrev_b32 v6, 4, v6
    v_lshl_add_u32 v5, v5, 12, v6
    s_lshl_b32 s42, s3, 10
    """)
    a.c("B frag read addrs: a0 = t*256 + ((8kh+h)^(t&15))*16 ; u=0: +8192*kh ; u=1: +8192*(1-kh)")
    a(f"""
    s_lshl_b32 s46, s37, 3
    v_add_u32 v6, s46, v3
    v_and_b32 v7, 15, v2
    v_xor_b32 v6, v6, v7
    v_lshlrev_b32 v6, 4, v6
    v_lshl_add_u32 v6, v2, 8, v6
    s_lshl_b32 s46, s37, 13
    v_add_u32 v{AD}, s46, v6
    v_xor_b32 v{AD+1}, 32, v{AD}
    v_xor_b32 v{AD+2}, 64, v{AD}
    v_xor_b32 v{AD+3}, 0x60, v{AD}
    """)
    for j in range(4): a(f"v_xor_b32 v{AD+4+j}, 0x2000, v{AD+j}")
    a("s_waitcnt lgkmcnt(0)")
    srd(a, 24, 14, WS_BYTES)
    srd(a, 16, 4, 2048*2048*2)
    srd(a, 20, 6, 2048*2)
    a.c("z1 + bias loads")
    a(f"""
    s_lshl_b32 s43, s35, 1
    s_add_u32 s43, s43, s37
    s_mul_i32 s46, s43, 28
    s_add_u32 s46, s46, s39
    s_lshl_b32 s46, s46, 11
    s_add_u32 s46, s46, {Z1}
    s_lshl_b32 s47, s43, 6
    v_lshlrev_b32 v7, 1, v2
    """)
    for i in range(4): a(f"buffer_load_dwordx4 {vr(Z1R+4*i)}, v4, s[24:27], s46 offen offset:{i*1024}")
    a(f"buffer_load_ushort v{BV}, v7, s[20:23], s47 offen")
    def issue(st_set, wreg, zreg):
        a(f"s_add_u32 m0, s42, {st_set*16384}")
        a(f"s_mov_b32 s46, {wreg}")
        for q in range(4):
            a(f"buffer_load_dwordx4 v5, s[16:19], s46 offen lds")
            if q < 3: a("s_add_u32 m0, m0, 4096\ns_add_u32 s46, s46, 0x10000")
        a(f"s_mov_b32 s46, {zreg}")
        for jj in range(4):
            z = ZA + st_set*32 + jj*8
            a(f"buffer_load_dwordx4 {vr(z)}, v4, s[24:27], s46 offen")
            a(f"buffer_load_dwordx4 {vr(z+4)}, v4, s[24:27], s46 offen offset:1024")
            if jj < 3: a(f"s_add_u32 s46, s46, {28*1024}")
        a(f"s_add_u32 s41, s41, 256\ns_add_u32 s40, s40, {8*28*1024}")
    for st in range(3): issue(st, "s41", "s40")
    for i in range(64): a(f"v_mov_b32 v{ACC+i}, 0")
    a(f"""
    s_mov_b32 s44, 0
    s_waitcnt vmcnt(24)
    s_barrier
    ds_read_b128 {vr(BF)}, v{AD}
    ds_read_b128 {vr(BF+4)}, v{AD+4}
    GM_LOOP:
    """)
    for st in range(4):
        for jj in range(4):
            cur = BF + 8*(jj & 1); nxt = BF + 8*((jj+1) & 1)
            if jj == 3:
                a(f"""
                s_cmp_lt_u32 s44, {13 - st}
                s_cselect_b32 s48, s41, {BIG}
                s_cselect_b32 s49, s40, {BIG}
                s_waitcnt vmcnt(12)
                s_barrier
                """)
                nb = ((st+1) % 4)*16384
                a(f"ds_read_b128 {vr(nxt)}, v{AD} offset:{nb}\nds_read_b128 {vr(nxt+4)}, v{AD+4} offset:{nb}")
                issue((st+3) % 4, "s48", "s49")
            else:
                a(f"ds_read_b128 {vr(nxt)}, v{AD+jj+1} offset:{st*16384}\nds_read_b128 {vr(nxt+4)}, v{AD+4+jj+1} offset:{st*16384}")
            a("s_waitcnt lgkmcnt(2)")
            z = ZA + st*32 + jj*8
            for u in range(2):
                for fb in range(2):
                    ac = vr(ACC + 32*u + 16*fb, 16)
                    a(f"v_mfma_f32_32x32x16_bf16 {ac}, {vr(z+4*fb)}, {vr(cur+4*u)}, {ac}")
    a(f"""
    s_add_u32 s44, s44, 4
    s_cmp_lt_u32 s44, 16
    s_cbranch_scc1 GM_LOOP
    s_waitcnt vmcnt(0) lgkmcnt(0)
    s_barrier
    s_lshl_b32 s46, s3, 13
    v_add_u32 v5, s46, v4
    v_xor_b32 v6, 0x4000, v5
    s_nop 7
    """)
    for q in range(8): a(f"ds_write_b128 v5, {vr(ACC+32+4*q)} offset:{q*1024}")
    a("s_waitcnt lgkmcnt(0)\ns_barrier")
    for q in range(8): a(f"ds_read_b128 {vr(ZA+4*q)}, v6 offset:{q*1024}")
    a(f"""
    v_lshlrev_b32 v{BV}, 16, v{BV}
    v_mov_b32 v{BV+1}, v{BV}
    s_mul_i32 s46, s43, 84
    s_lshl_b32 s47, s39, 1
    s_add_u32 s46, s46, s47
    s_lshl_b32 s46, s46, 10
    s_add_u32 s46, s46, {HF + 28*1024}
    """)
    U = ZA + 64
    for i in range(16):
        a(f"v_lshlrev_b32 v{U+2*i}, 16, v{Z1R+i}\nv_and_b32 v{U+2*i+1}, 0xffff0000, v{Z1R+i}")
    for i in range(0, 32, 2): a(f"v_pk_add_f32 v[{ACC+i}:{ACC+i+1}], v[{ACC+i}:{ACC+i+1}], v[{BV}:{BV+1}]")
    a("s_waitcnt lgkmcnt(0)")
    for i in range(0, 32, 2): a(f"v_pk_add_f32 v[{ACC+i}:{ACC+i+1}], v[{ACC+i}:{ACC+i+1}], v[{ZA+i}:{ZA+i+1}]")
    for i in range(0, 32, 2): a(f"v_pk_mul_f32 v[{ACC+i}:{ACC+i+1}], v[{ACC+i}:{ACC+i+1}], v[{U+i}:{U+i+1}]")
    for i in range(16): a(f"v_cvt_pk_bf16_f32 v{ZA+i}, v{ACC+2*i}, v{ACC+2*i+1}")
    a("s_nop 1")
    for q in range(4):
        a(f"v_permlane32_swap_b32 v{ZA+4*q}, v{ZA+4*q+2}\nv_permlane32_swap_b32 v{ZA+4*q+1}, v{ZA+4*q+3}")
    a("s_nop 1")
    for q in range(4): a(f"buffer_store_dwordx4 {vr(ZA+4*q)}, v4, s[24:27], s46 offen offset:{q*1024}")
    a("s_endpgm")

def gen_tr(a):
    a.c("======== W transposer: n = s34 + s33 - 24 ; ksteps n, n+32, n+64")
    a(f"""
    TR_START:
    s_add_u32 s35, s34, s33
    s_sub_u32 s35, s35, 24
    s_waitcnt lgkmcnt(0)
    """)
    srd(a, 24, 14, WS_BYTES)
    a(f"""
    v_bfe_u32 v5, v1, 2, 2
    v_lshl_add_u32 v5, v3, 3, v5
    v_mul_u32_u24 v5, 896, v5
    v_bfe_u32 v6, v1, 4, 1
    v_lshl_add_u32 v5, v6, 5, v5
    v_and_b32 v6, 3, v1
    v_lshl_add_u32 v5, v6, 3, v5
    s_lshl_b32 s46, s3, 6
    v_add_u32 v5, s46, v5
    s_mov_b32 s19, 0x00020000
    TR_L0:
    s_cmp_lt_u32 s35, 28
    s_cselect_b32 s16, s8, s10
    s_cselect_b32 s17, s9, s11
    s_mov_b32 s18, {896*448*2}
    s_cselect_b32 s18, {448*448*2}, s18
    s_cselect_b32 s46, 0, 28
    s_and_b32 s17, s17, 0xffff
    s_sub_u32 s46, s35, s46
    s_mul_i32 s46, s46, 14336
    s_lshl_b32 s47, s3, 10
    s_add_u32 s46, s46, s47
    s_mov_b32 m0, s47
    s_mov_b32 s48, s3
    s_barrier
    TR_L1:
    buffer_load_dwordx4 v4, s[16:19], s46 offen lds
    s_add_u32 m0, m0, 4096
    s_add_u32 s46, s46, 4096
    s_add_u32 s48, s48, 4
    s_cmp_lt_u32 s48, 14
    s_cbranch_scc1 TR_L1
    s_waitcnt vmcnt(0)
    s_barrier
    s_mul_i32 s46, s35, 14
    s_add_u32 s46, s46, s3
    s_lshl_b32 s46, s46, 10
    s_add_u32 s46, s46, {WF}
    s_mov_b32 s48, s3
    v_mov_b32 v6, v5
    TR_L2:
    ds_read_b64_tr_b16 v[8:9], v6
    ds_read_b64_tr_b16 v[10:11], v6 offset:3584
    v_add_u32 v6, 0x100, v6
    s_waitcnt lgkmcnt(0)
    buffer_store_dwordx4 v[8:11], v4, s[24:27], s46 offen
    s_add_u32 s46, s46, 4096
    s_add_u32 s48, s48, 4
    s_cmp_lt_u32 s48, 14
    s_cbranch_scc1 TR_L2
    s_add_u32 s35, s35, 32
    s_cmp_lt_u32 s35, 84
    s_cbranch_scc1 TR_L0
    s_endpgm
    """)

def gen_k2(a):
    khead(a, "k2_kernel")
    a(f"""
    s_cmp_ge_u32 s2, 512
    s_cbranch_scc1 K2_END
    s_load_dwordx4 s[4:7], s[0:1], 40
    s_load_dwordx2 s[8:9], s[0:1], 16
    s_load_dwordx2 s[10:11], s[0:1], 56
    s_load_dwordx2 s[14:15], s[0:1], 80
    v_lshrrev_b32 v1, 6, v0
    v_and_b32 v2, 31, v0
    v_readfirstlane_b32 s3, v1
    v_and_b32 v1, 63, v0
    v_bfe_u32 v3, v0, 5, 1
    v_lshlrev_b32 v4, 4, v1
    s_cmp_ge_u32 s2, 256
    s_cbranch_scc1 GM_START
    """)
    gen_attn(a)
    gen_gemm(a)
    gen_tr(a)
    a("K2_END:\ns_endpgm")
    return kdesc("k2_kernel", 252, 56)
```

```python
from common import *
LAUNCH = "; @launch kernel=k3_kernel grid=(224,1,1) block=(256,1,1) lds=69632"
ROWB = 272; REG = 64*ROWB
def gen_k3(a):
    ACC, RB, D = 192, 0, 12
    RB = 8; D = 11
    ACC = 184; XR = 248
    khead(a, "k3_kernel")
    a(f"""
    s_cmp_ge_u32 s2, 224
    s_cbranch_scc1 K3_END
    s_load_dwordx2 s[4:5], s[0:1], 0
    s_load_dwordx2 s[6:7], s[0:1], 64
    s_load_dwordx2 s[14:15], s[0:1], 80
    v_lshrrev_b32 v1, 6, v0
    v_and_b32 v2, 31, v0
    v_readfirstlane_b32 s3, v1
    v_and_b32 v1, 63, v0
    v_bfe_u32 v3, v0, 5, 1
    v_lshlrev_b32 v4, 4, v1
    s_and_b32 s32, s2, 7
    s_lshr_b32 s33, s2, 3
    s_mul_i32 s34, s33, 37
    s_lshr_b32 s34, s34, 8
    s_mul_i32 s35, s34, 7
    s_sub_u32 s35, s33, s35
    s_lshl_b32 s32, s32, 2
    s_add_u32 s34, s34, s32
    """)
    a.c("s34=tt64 s35=nt ; s40=A0 off, s41=A1 off, s42=W off")
    a(f"""
    s_mul_i32 s40, s34, 168
    s_mul_i32 s46, s3, 21
    s_add_u32 s40, s40, s46
    s_lshl_b32 s40, s40, 10
    s_add_u32 s40, s40, {HF}
    s_add_u32 s41, s40, {84*1024}
    s_mul_i32 s42, s46, 14
    s_lshl_b32 s47, s35, 1
    s_add_u32 s42, s42, s47
    s_lshl_b32 s42, s42, 10
    s_add_u32 s42, s42, {WF}
    v_lshrrev_b32 v5, 2, v0
    v_and_b32 v6, 3, v0
    v_mul_u32_u24 v7, 896, v5
    v_lshl_add_u32 v7, v6, 5, v7
    s_mul_i32 s43, s34, {64*896}
    s_lshl_b32 s47, s35, 7
    s_add_u32 s43, s43, s47
    s_waitcnt lgkmcnt(0)
    """)
    srd(a, 24, 14, WS_BYTES)
    srd(a, 16, 4, 2048*448*2)
    srd(a, 20, 6, 2048*448*2)
    a(f"buffer_load_dwordx4 {vr(XR)}, v7, s[16:19], s43 offen\nbuffer_load_dwordx4 {vr(XR+4)}, v7, s[16:19], s43 offen offset:16")
    def ld(i):
        r = RB + 16*(i % D)
        o = (i % 4)*1024
        a(f"buffer_load_dwordx4 {vr(r)}, v4, s[24:27], s42 offen")
        a(f"buffer_load_dwordx4 {vr(r+4)}, v4, s[24:27], s42 offen offset:1024")
        a(f"buffer_load_dwordx4 {vr(r+8)}, v4, s[24:27], s40 offen offset:{o}")
        a(f"buffer_load_dwordx4 {vr(r+12)}, v4, s[24:27], s41 offen offset:{o}")
        a(f"s_add_u32 s42, s42, {14*1024}")
        if i % 4 == 3: a("s_add_u32 s40, s40, 4096\ns_add_u32 s41, s41, 4096")
    for i in range(D-1): ld(i)
    for i in range(21):
        nxt = i + D - 1
        if nxt < 21: ld(nxt)
        out = min(21, i + D) - (i + 1)
        a(f"s_waitcnt vmcnt({4*out})")
        r = RB + 16*(i % D)
        for tb in range(2):
            for nb in range(2):
                ac = vr(ACC + 32*tb + 16*nb, 16)
                c = "0" if i == 0 else ac
                a(f"v_mfma_f32_32x32x16_bf16 {ac}, {vr(r+4*nb)}, {vr(r+8+4*tb)}, {c}")
    a.c("write partials [t][n] fp32, row 272B")
    a(f"""
    s_mul_i32 s46, s3, {REG}
    v_mul_u32_u24 v8, {ROWB}, v2
    v_lshl_add_u32 v8, v3, 4, v8
    v_add_u32 v8, s46, v8
    v_mul_u32_u24 v9, {ROWB}, v5
    v_lshl_add_u32 v9, v6, 6, v9
    s_nop 7
    s_nop 3
    """)
    for tb in range(2):
        for nb in range(2):
            for g in range(4):
                a(f"ds_write_b128 v8, {vr(ACC+32*tb+16*nb+4*g)} offset:{tb*32*ROWB + nb*128 + g*32}")
    a("s_waitcnt lgkmcnt(0)\ns_barrier")
    for w in range(4):
        for i in range(4):
            a(f"ds_read_b128 {vr(16+16*w+4*i)}, v9 offset:{w*REG + 16*i}")
    for i in range(8):
        a(f"v_lshlrev_b32 v{96+2*i}, 16, v{XR+i}\nv_and_b32 v{97+2*i}, 0xffff0000, v{XR+i}")
    for w in range(4):
        a(f"s_waitcnt lgkmcnt({12-4*w})")
        for i in range(0, 16, 2): a(f"v_pk_add_f32 v[{96+i}:{97+i}], v[{96+i}:{97+i}], v[{16+16*w+i}:{17+16*w+i}]")
    for i in range(8): a(f"v_cvt_pk_bf16_f32 v{112+i}, v{96+2*i}, v{97+2*i}")
    a(f"""
    buffer_store_dwordx4 v[112:115], v7, s[20:23], s43 offen
    buffer_store_dwordx4 v[116:119], v7, s[20:23], s43 offen offset:16
    K3_END:
    s_endpgm
    """)
    return kdesc("k3_kernel", 256, 56)
```

```python
import sys
from common import *
import k1
HEAD = open('parallel_sum__softmax_full_mha__mixer_gmlp__prompt.s.ref').read().split('; Override launch')[0]
def build(which, out):
    a = Asm()
    descs = []
    launches = []
    if 1 in which:
        descs.append(k1.gen_k1(a)); launches.append("; @launch kernel=k1_kernel grid=(256,1,1) block=(512,1,1) lds=163840")
    if 2 in which:
        import k2
        descs.append(k2.gen_k2(a)); launches.append(k2.LAUNCH)
    if 3 in which:
        import k3
        descs.append(k3.gen_k3(a)); launches.append(k3.LAUNCH)
    txt = HEAD + "\n".join(launches) + '\n.amdgcn_target "amdgcn-amd-amdhsa--gfx950"\n.text\n' + a.text() + '.section .rodata,"a"\n' + "".join(descs)
    open(out, 'w').write(txt)
if __name__ == "__main__":
    which = [int(c) for c in sys.argv[1]]
    build(which, sys.argv[2])
```

```python
import struct
MB = 1 << 20
QF, KF, VF, Z1, Z2F, HF, OF, WF, ST = 0, 2*MB, 4*MB, 6*MB, 10*MB, 14*MB, 18*MB, 20*MB, 22*MB
WS_BYTES = 24*MB
def f32(x): return "0x%08x" % struct.unpack("<I", struct.pack("<f", x))[0]
class Asm:
    def __init__(self): self.L = []
    def __call__(self, s):
        for ln in s.strip("\n").split("\n"):
            ln = ln.strip()
            if ln: self.L.append(("" if ln.endswith(":") else "  ") + ln)
    def c(self, s): self.L.append("  ; " + s)
    def text(self): return "\n".join(self.L) + "\n"
def vr(b, n=4): return f"v[{b}:{b+n-1}]"
def sr(b, n=2): return f"s[{b}:{b+n-1}]"
def srd(a, d, lo, nbytes):
    a(f"s_mov_b32 s{d}, s{lo}\ns_and_b32 s{d+1}, s{lo+1}, 0xffff\ns_mov_b32 s{d+2}, {nbytes}\ns_mov_b32 s{d+3}, 0x00020000")
def kdesc(name, vgpr, sgpr):
    import os
    if os.environ.get("STAMPS", "0") == "1": vgpr, sgpr = 256, 100
    acc = (vgpr + 3)//4*4
    return f""".p2align 6
.amdhsa_kernel {name}
  .amdhsa_next_free_vgpr {vgpr}
  .amdhsa_next_free_sgpr {sgpr}
  .amdhsa_accum_offset {acc}
  .amdhsa_group_segment_fixed_size 0
  .amdhsa_float_denorm_mode_32 3
  .amdhsa_kernarg_size 88
  .amdhsa_user_sgpr_count 2
  .amdhsa_user_sgpr_kernarg_segment_ptr 1
  .amdhsa_system_sgpr_workgroup_id_x 1
.end_amdhsa_kernel
"""
def khead(a, name):
    a.L += [f".globl {name}", ".p2align 8", f".type {name},@function", f"{name}:"]

import os
STAMPS = os.environ.get("STAMPS", "0") == "1"
STAMP_BASE = 23*MB
def stamp_init(a):
    if STAMPS: a("s_mov_b64 s[98:99], 1\nv_mov_b32 v255, 0")
def stamp(a, real=False):
    if STAMPS:
        a(("s_memrealtime" if real else "s_memtime") + " s[96:97]\ns_waitcnt lgkmcnt(0)\ns_mov_b64 exec, s[98:99]\nv_mov_b32 v255, s96\ns_mov_b64 exec, -1\ns_lshl_b64 s[98:99], s[98:99], 1")
def stamp_flush(a, kidx, nw):
    if STAMPS:
        a(f"""
        s_mov_b64 exec, -1
        s_mul_i32 s96, s2, {nw}
        s_add_u32 s96, s96, s3
        s_lshl_b32 s96, s96, 8
        s_add_u32 s96, s96, {STAMP_BASE + 0}
        v_mbcnt_lo_u32_b32 v254, -1, 0
        v_mbcnt_hi_u32_b32 v254, -1, v254
        v_lshlrev_b32 v254, 2, v254
        s_mov_b32 s26, 0x7fffffff
        s_add_u32 s96, s96, {kidx*MB*8}
        buffer_store_dword v255, v254, s[24:27], s96 offen
        """)
```

```python
from common import *
import math
SLOT = 14336
SB = 6144
PST = 0
CSB = 0
MU = 4096
RS = 4608
QT = 5120
T_Z2, T_Z1, T_Q, T_K, T_V = 0, 1, 2, 3, 4

def k1_table():
    qkv = [(t, p) for p in range(7) for t in (T_Q, T_K, T_V)]
    split = qkv.pop()
    tab = []
    for s in range(8): tab.append([(T_Z2, s), qkv.pop(0), (T_Z1, s)])
    z1 = list(range(8, 14))
    for s in range(6):
        if s < 2: tab.append([(T_Z2, 8+s), qkv.pop(0), (T_Z1, z1.pop(0))])
        else: tab.append([(T_Z2, 8+s), qkv.pop(0), qkv.pop(0)])
    for s in range(2): tab.append([(T_Z1, z1.pop(0)), qkv.pop(0), (T_Z1, z1.pop(0)), split])
    assert not qkv and not z1
    words = []
    for s in range(16):
        row = []
        for i, (t, p) in enumerate(tab[s]):
            cb = {T_Z1: 0, T_Z2: 1792, T_Q: 0, T_K: 896, T_V: 1792}[t] + p*128
            row.append(t | ((s-14 if i == 3 else 0) << 4) | (p << 8) | (cb << 16))
        if len(row) == 3: row.append(0xFFFFFFFF)
        words.append(row)
    return words

def gen_k1(a):
    XA, ACC, WR, Z2H, BP, AP, T = 16, 128, 144, 172, 188, 192, 196
    SEL, CSA = 236, 240
    RSV, L16, NH, R16 = 244, 245, 246, 247
    K1c, K2c, IRS = 248, 249, 250
    c1 = -2*math.log2(math.e)*math.sqrt(2/math.pi); c2 = c1*0.044715
    khead(a, "k1_kernel")
    a(f"""
    s_cmp_ge_u32 s2, 256
    s_cbranch_scc1 K1_END
    s_load_dwordx4 s[4:7], s[0:1], 0
    s_load_dwordx2 s[8:9], s[0:1], 32
    s_load_dwordx4 s[12:15], s[0:1], 72
    s_getpc_b64 s[44:45]
    K1_PC:
    s_and_b32 s46, s2, 1
    s_lshl_b32 s46, s46, 3
    s_bfe_u32 s33, s2, 0x30003
    s_add_u32 s33, s33, s46
    s_lshl_b32 s46, s33, 4
    s_add_u32 s44, s44, s46
    s_addc_u32 s45, s45, 0
    s_add_u32 s44, s44, K1_TAB-K1_PC
    s_addc_u32 s45, s45, 0
    s_load_dwordx4 s[28:31], s[44:45], 0
    v_lshrrev_b32 v1, 6, v0
    s_bfe_u32 s32, s2, 0x20001
    v_readfirstlane_b32 s3, v1
    s_lshl_b32 s32, s32, 2
    s_lshr_b32 s46, s2, 6
    s_add_u32 s32, s32, s46
    v_and_b32 v1, 63, v0
    v_and_b32 v2, 31, v0
    v_bfe_u32 v3, v0, 5, 1
    s_lshr_b32 s34, s3, 2
    s_and_b32 s35, s3, 3
    s_lshl_b32 s36, s32, 2
    s_add_u32 s36, s36, s35
    """)
    stamp_init(a); stamp(a, True); stamp(a)
    a.c("x DMA voffsets: vE=v14, vO=v15")
    a(f"""
    v_lshrrev_b32 v8, 3, v1
    v_lshrrev_b32 v9, 4, v1
    v_and_b32 v10, 7, v1
    v_xor_b32 v11, v10, v9
    v_lshlrev_b32 v11, 4, v11
    v_lshl_add_u32 v14, v8, 7, v11
    v_xor_b32 v15, 64, v14
    s_lshl_b32 s46, s32, 7
    s_lshl_b32 s47, s3, 4
    s_add_u32 s46, s46, s47
    s_mul_i32 s40, s46, 896
    s_mul_i32 s47, s3, {SLOT}
    s_add_u32 s47, s47, {SB}
    s_waitcnt lgkmcnt(0)
    """)
    srd(a, 16, 4, 2048*448*2)
    a("s_mov_b32 m0, s47")
    srd(a, 24, 14, WS_BYTES)
    for i in range(14):
        if i % 4 == 0 and i > 0:
            a("s_add_u32 m0, m0, 4096\ns_add_u32 s40, s40, 4096")
        a(f"buffer_load_dwordx4 v{14 + (i & 1)}, s[16:19], s40 offen offset:{(i % 4)*1024} lds")
    a(f"""
    v_and_b32 v9, 1, v9
    v_lshlrev_b32 v9, 2, v9
    v_xor_b32 v10, v10, v9
    v_lshlrev_b32 v10, 4, v10
    v_mul_u32_u24 v4, 2688, v8
    v_add_u32 v4, v4, v10
    v_mul_u32_u24 v5, 3584, v8
    v_add_u32 v5, v5, v10
    s_cmp_eq_u32 s31, -1
    s_cselect_b32 s37, 6, 7
    s_cmp_eq_u32 s3, 7
    s_cbranch_scc1 K1_T0_DONE
    s_mov_b32 s48, 0
    s_mul_i32 s49, s3, 6
    s_mov_b32 s50, 6
    s_call_b64 s[42:43], K1_DMA
    K1_T0_DONE:
    """)
    a.c("x frag read addresses into XA[4j]")
    a(f"""
    v_mul_u32_u24 v8, 7, v2
    s_mul_i32 s46, s35, {2*SLOT}
    s_add_u32 s46, s46, {SB}
    """)
    for cg in range(7):
        b = XA + 16*cg
        a(f"""
        v_add_u32 v9, {cg}, v8
        v_bfe_u32 v10, v9, 1, 3
        v_xor_b32 v10, v10, v3
        v_lshlrev_b32 v10, 4, v10
        v_lshl_add_u32 v9, v9, 7, s46
        v_add_u32 v{b}, v9, v10
        v_xor_b32 v{b+4}, 32, v{b}
        v_xor_b32 v{b+8}, 64, v{b}
        v_xor_b32 v{b+12}, 0x60, v{b}
        """)
    a.c("tr lane offset v7 (b=0)")
    a(f"""
    v_bfe_u32 v8, v1, 2, 2
    v_lshl_add_u32 v9, v3, 3, v8
    v_lshlrev_b32 v9, 7, v9
    v_bfe_u32 v10, v1, 4, 1
    v_lshlrev_b32 v12, 1, v10
    v_bfe_u32 v11, v1, 1, 1
    v_add_u32 v12, v12, v11
    v_lshrrev_b32 v8, 1, v8
    v_lshlrev_b32 v8, 2, v8
    v_xor_b32 v12, v12, v8
    v_lshl_add_u32 v9, v12, 4, v9
    v_and_b32 v12, 1, v1
    v_lshl_add_u32 v7, v12, 3, v9
    v_lshlrev_b32 v{L16}, 4, v1
    v_lshlrev_b32 v{R16}, 4, v2
    v_cvt_f32_u32 v{NH}, v3
    v_subrev_f32 v{NH}, 1.0, v{NH}
    v_mov_b32 v{BP+2}, 0
    v_mov_b32 v{BP+3}, 0
    v_mov_b32 v{AP+2}, 0
    v_mov_b32 v{AP+3}, 0
    s_mov_b32 s51, 0x3f803f80
    v_and_b32 v8, 15, v1
    v_cmp_eq_u32 vcc, v8, v10
    v_mov_b32 v9, s51
    s_nop 0
    v_cndmask_b32 v{SEL}, 0, v9, vcc
    v_mov_b32 v{SEL+1}, v{SEL}
    v_mov_b32 v{SEL+2}, v{SEL}
    v_mov_b32 v{SEL+3}, v{SEL}
    """)
    a.c("qk offset table: entry e=(nb,h,g) -> col4=8nb+2g+h ; threads 0..111")
    a(f"""
    v_and_b32 v8, 3, v0
    v_bfe_u32 v9, v0, 2, 1
    v_lshrrev_b32 v10, 3, v0
    v_lshl_add_u32 v9, v8, 1, v9
    v_lshl_add_u32 v10, v10, 3, v9
    v_mul_u32_u24 v11, 147, v10
    v_lshrrev_b32 v11, 10, v11
    v_mul_u32_u24 v12, 7, v11
    v_sub_u32 v10, v10, v12
    v_lshlrev_b32 v11, 17, v11
    v_lshrrev_b32 v12, 1, v10
    v_lshl_add_u32 v11, v12, 9, v11
    v_and_b32 v10, 1, v10
    v_lshl_add_u32 v11, v10, 3, v11
    v_lshlrev_b32 v8, 2, v0
    v_cmp_gt_u32 vcc, 112, v0
    s_and_saveexec_b64 s[46:47], vcc
    ds_write_b32 v8, v11 offset:{QT}
    s_mov_b64 exec, -1
    """)
    for i in range(8): a(f"v_mov_b32 v{T+i}, 0")
    a(f"""
    s_lshl_b32 s46, s3, 9
    v_lshl_add_u32 v8, v1, 3, s46
    """)
    stamp(a)
    a("s_waitcnt vmcnt(0)\ns_barrier")
    stamp(a)
    def rdstats(j0):
        for jj in range(14):
            j = (j0 + jj) % 28
            a(f"ds_read_b128 {vr(XA+4*j)}, v{XA+4*j}")
        for jj in range(14):
            j = j0 + jj; j2 = (j0 + 14 + jj) % 28
            a(f"s_waitcnt lgkmcnt(13)")
            a(f"ds_read_b128 {vr(XA+4*j2)}, v{XA+4*j2}")
            for i in range(4):
                a(f"v_dot2c_f32_bf16 v{T+i}, s51, v{XA+4*j+i}")
                a(f"v_dot2c_f32_bf16 v{T+4+i}, v{XA+4*j+i}, v{XA+4*j+i}")
    a("s_cmp_eq_u32 s34, 1\ns_cbranch_scc1 K1_RB")
    rdstats(0)
    a("s_branch K1_RDONE\nK1_RB:")
    rdstats(14)
    a(f"""
    K1_RDONE:
    s_nop 1
    v_add_f32 v{T}, v{T}, v{T+1}
    v_add_f32 v{T+2}, v{T+2}, v{T+3}
    v_add_f32 v{T+4}, v{T+4}, v{T+5}
    v_add_f32 v{T+6}, v{T+6}, v{T+7}
    v_add_f32 v{T}, v{T}, v{T+2}
    v_add_f32 v{T+1}, v{T+4}, v{T+6}
    ds_write_b64 v8, v[{T}:{T+1}] offset:{PST}
    s_mov_b32 s38, 0
    s_cmp_eq_u32 s34, 0
    s_cbranch_scc1 K1_SETUP
    s_waitcnt lgkmcnt(0)
    s_barrier
    """)
    a.c("group B: q3 share, finalize stats")
    a(f"""
    s_mov_b32 s48, 3
    s_lshl_b32 s49, s35, 2
    s_cmp_eq_u32 s35, 3
    s_cselect_b32 s50, 2, 4
    s_call_b64 s[42:43], K1_DMA
    v_subrev_u32 v9, 2048, v8
    ds_read_b64 v[{T+8}:{T+9}], v9 offset:{PST}
    s_waitcnt lgkmcnt(0)
    v_add_f32 v{T}, v{T}, v{T+8}
    v_add_f32 v{T+1}, v{T+1}, v{T+9}
    v_mov_b32 v{T+2}, v{T}
    v_mov_b32 v{T+3}, v{T+1}
    s_nop 1
    v_permlane32_swap_b32 v{T}, v{T+2}
    v_permlane32_swap_b32 v{T+1}, v{T+3}
    s_nop 1
    v_add_f32 v{T}, v{T}, v{T+2}
    v_add_f32 v{T+1}, v{T+1}, v{T+3}
    v_mul_f32 v{T}, {f32(1/448)}, v{T}
    v_mul_f32 v{T+1}, {f32(1/448)}, v{T+1}
    v_fma_f32 v{T+1}, -v{T}, v{T}, v{T+1}
    v_max_f32 v{T+1}, 0, v{T+1}
    v_add_f32 v{T+1}, {f32(1e-5)}, v{T+1}
    v_rsq_f32 v{T+1}, v{T+1}
    s_lshl_b32 s46, s35, 7
    v_lshl_add_u32 v8, v2, 2, s46
    ds_write_b32 v8, v{T} offset:{MU}
    ds_write_b32 v8, v{T+1} offset:{RS}
    s_lshl_b32 s46, s33, 6
    s_add_u32 s46, s46, s36
    s_lshl_b32 s46, s46, 11
    s_add_u32 s46, s46, {KF + 1024 + 512 + 8}
    v_mov_b32 v10, 0x3f803f80
    v_mov_b32 v11, 0x3f80
    s_waitcnt vmcnt(0)
    buffer_store_dwordx2 v[10:11], v{R16}, s[24:27], s46 offen
    s_barrier
    s_mov_b32 s48, s3
    s_mov_b32 s49, 0
    s_mov_b32 s50, 14
    s_call_b64 s[42:43], K1_DMA
    s_mov_b32 s38, -1
    s_branch K1_CS
    """)
    def getdesc(kreg, dst):
        a(f"""
        s_lshr_b32 s46, {kreg}, 1
        s_cmp_eq_u32 s46, 1
        s_cselect_b32 {dst}, s29, s28
        s_cmp_eq_u32 s46, 2
        s_cselect_b32 {dst}, s30, {dst}
        s_cmp_eq_u32 s46, 3
        s_cselect_b32 {dst}, s31, {dst}
        """)
    def halfbits(kreg, desc, dst):
        a(f"""
        s_and_b32 {dst}, {kreg}, 1
        s_bfe_u32 s47, {desc}, 0x10004
        s_or_b32 {dst}, {dst}, s47
        """)
    def slotbase(qreg, dst):
        a(f"""
        s_add_u32 {dst}, {qreg}, 8
        s_sub_u32 s47, {dst}, 11
        s_cmp_ge_u32 {dst}, 11
        s_cselect_b32 {dst}, s47, {dst}
        s_sub_u32 s47, {dst}, 11
        s_cmp_ge_u32 {dst}, 11
        s_cselect_b32 {dst}, s47, {dst}
        s_mul_i32 {dst}, {dst}, {SLOT}
        s_add_u32 {dst}, {dst}, {SB}
        """)
    def rd(j):
        w = WR + 4*(j % 7); s = j // 7; off = (j % 7)*2048
        a(f"ds_read_b64_tr_b16 v[{w}:{w+1}], v{8+s} offset:{off}")
        a(f"ds_read_b64_tr_b16 v[{w+2}:{w+3}], v{8+s} offset:{off+512}")
    a("K1_SETUP:")
    getdesc("s38", "s52")
    halfbits("s38", "s52", "s53")
    a(f"""
    s_lshl_b32 s54, s53, 6
    v_xor_b32 v12, s54, v7
    s_lshr_b32 s55, s38, 1
    s_lshl_b32 s55, s55, 2
    """)
    slotbase("s55", "s56")
    for s in range(4):
        a(f"v_add_u32 v{8+s}, s56, v12")
        if s < 3: a(f"s_add_u32 s56, s56, {SLOT}\ns_cmp_ge_u32 s56, {SB+11*SLOT}\ns_cselect_b32 s56, {SB}, s56")
    a(f"""
    s_and_b32 s57, s52, 7
    s_cmp_eq_u32 s38, 2
    s_cbranch_scc1 K1_NOPRE
    s_waitcnt lgkmcnt(0)
    """)
    for j in range(6): rd(j)
    stamp(a)
    a("s_barrier\ns_branch K1_GO\nK1_NOPRE:\ns_waitcnt lgkmcnt(0)")
    stamp(a)
    a("s_barrier")
    for j in range(6): rd(j)
    a("K1_GO:")
    stamp(a)
    a(f"s_cmp_eq_u32 s57, {T_V}\ns_cbranch_scc1 K1_MF_D")
    def mf(orient, tag):
        for j in range(28):
            if j == 14:
                a(f"s_cmp_lg_u32 s38, 0\ns_cbranch_scc1 K1_NB{tag}\ns_barrier\nK1_NB{tag}:")
            n_out = min(5, 27 - j)
            a(f"s_waitcnt lgkmcnt({2*n_out})")
            w = vr(WR + 4*(j % 7)); x = vr(XA + 4*j)
            c = "0" if j == 0 else vr(ACC, 16)
            if orient == 'T': a(f"v_mfma_f32_32x32x16_bf16 {vr(ACC,16)}, {w}, {x}, {c}")
            else: a(f"v_mfma_f32_32x32x16_bf16 {vr(ACC,16)}, {x}, {w}, {c}")
            if j + 6 < 28: rd(j + 6)
    mf('T', 'T')
    a("s_branch K1_MF_DONE\nK1_MF_D:")
    mf('D', 'D')
    a("K1_MF_DONE:")
    a.c("pre-barrier: addresses for epilogue reads")
    a(f"""
    s_and_b32 s46, s38, 1
    s_lshl_b32 s46, s46, 9
    v_add_u32 v8, s46, v{R16}
    s_lshl_b32 s46, s35, 7
    v_lshl_add_u32 v9, v2, 2, s46
    s_bfe_u32 s58, s52, 0x80008
    s_lshl_b32 s58, s58, 1
    s_add_u32 s58, s58, s53
    s_lshl_b32 s46, s58, 5
    v_lshl_add_u32 v10, v3, 4, s46
    """)
    stamp(a)
    a("s_waitcnt vmcnt(0)\ns_barrier")
    stamp(a)
    Y, U = T, T+16
    QO = T+32
    a(f"""
    ds_read_b128 {vr(T)}, v8 offset:{CSB}
    ds_read_b32 v{T+8}, v9 offset:{MU}
    ds_read_b32 v{RSV}, v9 offset:{RS}
    ds_read_b128 {vr(QO)}, v10 offset:{QT}
    s_cmp_lg_u32 s38, 3
    s_cbranch_scc1 K1_NOSIG
    s_cmp_lg_u32 s3, 4
    s_cbranch_scc1 K1_NOSIG
    s_cmp_lg_u32 s37, 6
    s_cbranch_scc1 K1_NOSIG
    s_lshl_b32 s46, s32, 2
    v_mov_b32 v12, s46
    v_mov_b32 v13, 1
    s_mov_b64 exec, 1
    global_atomic_add v12, v13, s[12:13] sc1
    s_mov_b64 exec, -1
    K1_NOSIG:
    s_waitcnt lgkmcnt(1)
    v_add_f32 v{T}, v{T}, v{T+1}
    v_add_f32 v{T+2}, v{T+2}, v{T+3}
    v_mul_f32 v{T+8}, v{T+8}, v{NH}
    v_add_f32 v{T}, v{T}, v{T+2}
    v_cvt_pk_bf16_f32 v{BP}, v{T+8}, v{T+8}
    v_cvt_pk_bf16_f32 v{AP+1}, v{T}, v{T}
    v_lshlrev_b32 v{T+2}, 16, v{BP}
    v_lshlrev_b32 v{T+1}, 16, v{AP+1}
    v_sub_f32 v{T+2}, v{T+8}, v{T+2}
    v_sub_f32 v{T+1}, v{T}, v{T+1}
    v_cvt_pk_bf16_f32 v{BP+1}, v{T+2}, 0
    v_cvt_pk_bf16_f32 v{AP}, v{T}, v{T+1}
    s_cmp_eq_u32 s57, {T_V}
    s_cbranch_scc1 K1_EV0
    v_mfma_f32_32x32x16_bf16 {vr(ACC,16)}, {vr(AP)}, {vr(BP)}, {vr(ACC,16)}
    s_branch K1_EV1
    K1_EV0:
    v_mfma_f32_32x32x16_bf16 {vr(ACC,16)}, {vr(BP)}, {vr(AP)}, {vr(ACC,16)}
    K1_EV1:
    """)
    a.c("DMA issue points")
    a(f"""
    s_mov_b32 s49, 0
    s_mov_b32 s50, 14
    s_cmp_gt_u32 s38, 3
    s_cbranch_scc1 K1_DNO
    s_cmp_eq_u32 s38, 0
    s_cbranch_scc0 K1_D1
    s_add_u32 s48, s35, 8
    s_cmp_lt_u32 s35, 3
    s_cbranch_scc1 K1_DGO
    s_branch K1_DNO
    K1_D1:
    s_cmp_eq_u32 s38, 1
    s_cbranch_scc0 K1_D3
    s_add_u32 s48, s35, 11
    s_cmp_eq_u32 s35, 0
    s_cbranch_scc1 K1_DGO
    s_cmp_eq_u32 s37, 7
    s_cbranch_scc1 K1_DGO
    s_branch K1_DNO
    K1_D3:
    s_cmp_eq_u32 s38, 3
    s_cbranch_scc0 K1_DNO
    s_cmp_eq_u32 s37, 7
    s_cbranch_scc0 K1_DNO
    s_mov_b32 s48, 15
    s_lshl_b32 s49, s35, 2
    s_cmp_eq_u32 s35, 3
    s_cselect_b32 s50, 2, 4
    K1_DGO:
    s_call_b64 s[42:43], K1_DMA
    K1_DNO:
    s_cmp_eq_u32 s57, {T_V}
    s_cbranch_scc1 K1_EV
    s_cmp_ge_u32 s57, {T_Q}
    s_cbranch_scc1 K1_EQK
    """)
    a.c("---- Z1/Z2: gelu")
    a(f"""
    v_mul_f32 v{K1c}, {f32(c1)}, v{RSV}
    v_mul_f32 v{K2c}, v{RSV}, v{RSV}
    v_rcp_f32 v{IRS}, v{RSV}
    v_mul_f32 v{K2c}, v{K2c}, v{RSV}
    v_mul_f32 v{K2c}, {f32(c2)}, v{K2c}
    s_nop 3
    """)
    for i in range(16): a(f"v_mul_f32 v{U+i}, v{ACC+i}, v{ACC+i}")
    for i in range(16): a(f"v_fma_f32 v{U+i}, v{U+i}, v{K2c}, v{K1c}")
    for i in range(16): a(f"v_mul_f32 v{U+i}, v{U+i}, v{ACC+i}")
    for i in range(16): a(f"v_exp_f32 v{U+i}, v{U+i}")
    for i in range(16): a(f"v_fma_f32 v{U+i}, v{U+i}, v{IRS}, v{IRS}")
    for i in range(16): a(f"v_rcp_f32 v{U+i}, v{U+i}")
    a(f"s_cmp_eq_u32 s57, {T_Z2}\ns_cbranch_scc1 K1_EZ2")
    for i in range(16): a(f"v_mul_f32 v{Y+i}, v{ACC+i}, v{U+i}")
    for i in range(8): a(f"v_cvt_pk_bf16_f32 v{U+i}, v{Y+2*i}, v{Y+2*i+1}")
    a(f"""
    s_mul_i32 s46, s36, 28
    s_add_u32 s46, s46, s58
    s_lshl_b32 s46, s46, 11
    s_add_u32 s46, s46, {Z1}
    buffer_store_dwordx4 {vr(U)}, v{L16}, s[24:27], s46 offen
    buffer_store_dwordx4 {vr(U+4)}, v{L16}, s[24:27], s46 offen offset:1024
    s_branch K1_CS
    K1_EZ2:
    """)
    for i in range(16): a(f"v_mul_f32 v{Z2H+i}, v{ACC+i}, v{U+i}")
    a(f"v_add_f32 v{Y}, v{Z2H}, v{Z2H+1}\nv_mul_f32 v{Y+1}, v{Z2H}, v{Z2H}\nv_add_f32 v{Y+2}, v{Z2H+2}, v{Z2H+3}\nv_mul_f32 v{Y+3}, v{Z2H+1}, v{Z2H+1}")
    for i in range(2, 16):
        a(f"v_fmac_f32 v{Y+1+2*(i&1)}, v{Z2H+i}, v{Z2H+i}")
        if i >= 4: a(f"v_add_f32 v{Y+2*(i&1)}, v{Y+2*(i&1)}, v{Z2H+i}")
    a(f"""
    v_add_f32 v{Y}, v{Y}, v{Y+2}
    v_add_f32 v{Y+1}, v{Y+1}, v{Y+3}
    v_mov_b32 v{Y+2}, v{Y}
    v_mov_b32 v{Y+3}, v{Y+1}
    s_mov_b32 s59, s58
    s_mul_i32 s46, s32, 28
    v_permlane32_swap_b32 v{Y}, v{Y+2}
    v_permlane32_swap_b32 v{Y+1}, v{Y+3}
    s_add_u32 s46, s46, s58
    s_lshl_b32 s46, s46, 10
    v_add_f32 v{Y}, v{Y}, v{Y+2}
    v_add_f32 v{Y+1}, v{Y+1}, v{Y+3}
    s_lshl_b32 s47, s35, 8
    s_add_u32 s46, s46, s47
    s_add_u32 s46, s46, {ST}
    v_lshlrev_b32 v8, 3, v2
    s_mov_b32 exec_hi, 0
    buffer_store_dwordx2 v[{Y}:{Y+1}], v8, s[24:27], s46 offen sc0 sc1
    s_mov_b32 exec_hi, -1
    s_branch K1_CS
    """)
    a.c("---- Q/K")
    a(f"""
    K1_EQK:
    s_cmp_eq_u32 s57, {T_Q}
    s_cselect_b32 s46, {f32(28**-0.5*math.log2(math.e))}, 1.0
    s_cselect_b32 s47, {QF}, {KF}
    v_mul_f32 v{RSV}, s46, v{RSV}
    s_lshl_b32 s46, s36, 11
    s_add_u32 s47, s47, s46
    s_waitcnt lgkmcnt(0)
    """)
    for g in range(4): a(f"v_add_u32 v{QO+g}, v{QO+g}, v{R16}")
    for i in range(16): a(f"v_mul_f32 v{Y+i}, v{ACC+i}, v{RSV}")
    for i in range(8): a(f"v_cvt_pk_bf16_f32 v{U+i}, v{Y+2*i}, v{Y+2*i+1}")
    for g in range(4):
        a(f"buffer_store_dwordx2 v[{U+2*g}:{U+2*g+1}], v{QO+g}, s[24:27], s47 offen")
    a("s_branch K1_CS")
    a.c("---- V")
    a(f"""
    K1_EV:
    s_lshl_b32 s46, s35, 7
    v_lshl_add_u32 v8, v3, 4, s46
    """)
    for g in range(4): a(f"ds_read_b128 {vr(U+4*g)}, v8 offset:{RS + 32*g}")
    a(f"""
    s_lshl_b32 s46, s58, 5
    v_add_u32 v10, s46, v2
    v_mul_u32_u24 v11, 2341, v10
    v_lshrrev_b32 v11, 16, v11
    v_mul_u32_u24 v12, 28, v11
    v_sub_u32 v10, v10, v12
    v_lshl_add_u32 v10, v3, 5, v10
    v_lshlrev_b32 v10, 4, v10
    v_lshl_add_u32 v10, v11, 17, v10
    s_lshl_b32 s46, s36, 11
    s_add_u32 s46, s46, {VF}
    s_waitcnt lgkmcnt(0)
    """)
    for i in range(16): a(f"v_mul_f32 v{Y+i}, v{ACC+i}, v{U+i}")
    for i in range(8): a(f"v_cvt_pk_bf16_f32 v{U+i}, v{Y+2*i}, v{Y+2*i+1}")
    a(f"""
    buffer_store_dwordx4 {vr(U)}, v10, s[24:27], s46 offen
    buffer_store_dwordx4 {vr(U+4)}, v10, s[24:27], s46 offen offset:1024
    """)
    a("K1_CS:")
    stamp(a)
    a(f"""
    s_add_u32 s60, s38, 1
    s_cmp_ge_u32 s60, s37
    s_cbranch_scc1 K1_TAIL
    """)
    a(f"""
    s_and_b32 s62, s60, 1
    s_bfe_u32 s47, s31, 0x10004
    s_cmp_eq_u32 s60, 6
    s_cselect_b32 s62, s47, s62
    s_lshl_b32 s62, s62, 6
    v_xor_b32 v12, s62, v7
    s_lshr_b32 s55, s60, 1
    s_lshl_b32 s55, s55, 2
    s_add_u32 s55, s55, s35
    """)
    slotbase("s55", "s56")
    a(f"v_add_u32 v8, s56, v12")
    for j in range(7):
        w = WR + 4*j
        a(f"ds_read_b64_tr_b16 v[{w}:{w+1}], v8 offset:{j*2048}")
        a(f"ds_read_b64_tr_b16 v[{w+2}:{w+3}], v8 offset:{j*2048+512}")
    a(f"""
    s_and_b32 s46, s60, 1
    s_lshl_b32 s46, s46, 9
    s_lshl_b32 s47, s35, 2
    s_add_u32 s46, s46, s47
    v_add_u32 v9, s46, v{R16}
    """)
    for j in range(7):
        a(f"s_waitcnt lgkmcnt({2*(6-j)})")
        c = "0" if j == 0 else vr(CSA)
        a(f"v_mfma_f32_16x16x32_bf16 {vr(CSA)}, {vr(SEL)}, {vr(WR+4*j)}, {c}")
    a(f"""
    s_add_u32 s38, s38, 2
    s_mov_b64 exec, 0xffff
    s_nop 6
    ds_write_b32 v9, v{CSA} offset:{CSB}
    ds_write_b32 v9, v{CSA+1} offset:{CSB+256}
    s_mov_b64 exec, -1
    s_cmp_lt_u32 s38, s37
    s_cbranch_scc1 K1_SETUP
    s_waitcnt lgkmcnt(0)
    s_barrier
    K1_TAIL:
    s_cmp_lg_u32 s37, 6
    s_cbranch_scc1 K1_FIN
    """)
    stamp(a)
    a(f"""
    s_lshl_b32 s46, s32, 2
    v_mov_b32 v8, s46
    K1_POLL:
    global_load_dword v9, v8, s[12:13] sc1
    s_waitcnt vmcnt(0)
    v_readfirstlane_b32 s46, v9
    s_cmp_ge_u32 s46, 14
    s_cbranch_scc1 K1_POLLED
    s_sleep 2
    s_branch K1_POLL
    K1_POLLED:
    """)
    stamp(a)
    a(f"""
    s_mul_i32 s46, s32, 28
    s_lshl_b32 s46, s46, 10
    s_lshl_b32 s47, s35, 8
    s_add_u32 s46, s46, s47
    s_add_u32 s46, s46, {ST}
    v_mul_u32_u24 v8, 14336, v3
    v_lshl_add_u32 v8, v2, 3, v8
    """)
    for i in range(14):
        if i % 4 == 0 and i: a("s_add_u32 s46, s46, 4096")
        a(f"buffer_load_dwordx2 v[{T+2*i}:{T+2*i+1}], v8, s[24:27], s46 offen offset:{(i%4)*1024} sc0 sc1")
    a(f"""
    s_lshl_b32 s46, s3, 11
    s_add_u32 s46, s46, {SB}
    v_lshl_add_u32 v8, v2, 6, s46
    v_lshl_add_u32 v8, v3, 3, v8
    v_bfe_u32 v9, v1, 2, 2
    v_lshl_add_u32 v9, v3, 3, v9
    v_lshlrev_b32 v9, 6, v9
    v_bfe_u32 v10, v1, 4, 1
    v_lshl_add_u32 v9, v10, 5, v9
    v_and_b32 v10, 3, v1
    v_lshl_add_u32 v9, v10, 3, v9
    v_add_u32 v9, s46, v9
    s_mul_i32 s46, s36, 56
    s_add_u32 s46, s46, s59
    s_lshl_b32 s46, s46, 10
    s_add_u32 s46, s46, {Z2F}
    s_add_u32 s47, s46, {28*1024}
    s_waitcnt vmcnt(0)
    """)
    stamp(a)
    for i in range(14): a(f"v_add_f32 v{T+i}, v{T+i}, v{T+i+14}")
    for i in range(6): a(f"v_add_f32 v{T+i}, v{T+i}, v{T+i+8}")
    for i in range(4): a(f"v_add_f32 v{T+i}, v{T+i}, v{T+i+4}")
    for i in range(2): a(f"v_add_f32 v{T+i}, v{T+i}, v{T+i+2}")
    a(f"""
    v_mov_b32 v{T+2}, v{T}
    v_mov_b32 v{T+3}, v{T+1}
    s_nop 1
    v_permlane32_swap_b32 v{T}, v{T+2}
    v_permlane32_swap_b32 v{T+1}, v{T+3}
    s_nop 1
    v_add_f32 v{T}, v{T}, v{T+2}
    v_add_f32 v{T+1}, v{T+1}, v{T+3}
    v_mul_f32 v{T}, {f32(1/896)}, v{T}
    v_mul_f32 v{T+1}, {f32(1/896)}, v{T+1}
    v_fma_f32 v{T+1}, -v{T}, v{T}, v{T+1}
    v_max_f32 v{T+1}, 0, v{T+1}
    v_add_f32 v{T+1}, {f32(1e-5)}, v{T+1}
    v_rsq_f32 v{T+2}, v{T+1}
    s_nop 0
    v_mul_f32 v{T+4}, v{T}, v{T+2}
    v_sub_f32 v{T+4}, 0, v{T+4}
    """)
    for i in range(16): a(f"v_fma_f32 v{Z2H+i}, v{Z2H+i}, v{T+2}, v{T+4}")
    for i in range(8): a(f"v_cvt_pk_bf16_f32 v{T+8+i}, v{Z2H+2*i}, v{Z2H+2*i+1}")
    for g in range(4): a(f"ds_write_b64 v8, v[{T+8+2*g}:{T+9+2*g}] offset:{16*g}")
    a(f"""
    s_waitcnt lgkmcnt(0)
    ds_read_b64_tr_b16 v[{T}:{T+1}], v9
    ds_read_b64_tr_b16 v[{T+2}:{T+3}], v9 offset:256
    ds_read_b64_tr_b16 v[{T+4}:{T+5}], v9 offset:1024
    ds_read_b64_tr_b16 v[{T+6}:{T+7}], v9 offset:1280
    s_waitcnt lgkmcnt(0)
    buffer_store_dwordx4 {vr(T)}, v{L16}, s[24:27], s46 offen
    buffer_store_dwordx4 {vr(T+4)}, v{L16}, s[24:27], s47 offen
    K1_FIN:
    """)
    stamp(a); stamp(a, True); stamp_flush(a, 0, 8)
    a("K1_END:\ns_endpgm")
    a("K1_DMA:")
    a(f"s_lshr_b32 s63, s48, 1")
    getdesc("s63", "s64")
    slotbase("s48", "s65")
    a(f"""
    s_and_b32 s66, s64, 7
    s_cmp_ge_u32 s66, {T_Q}
    s_cselect_b32 s20, s6, s8
    s_cselect_b32 s21, s7, s9
    s_mov_b32 s22, {448*1792*2}
    s_cselect_b32 s22, {448*1344*2}, s22
    s_movk_i32 s41, {3584*8}
    s_cselect_b32 s41, {2688*8}, s41
    s_cselect_b64 vcc, -1, 0
    s_and_b32 s21, s21, 0xffff
    s_mov_b32 s23, 0x00020000
    v_cndmask_b32 v6, v5, v4, vcc
    s_and_b32 s66, s48, 3
    s_mul_i32 s66, s66, 14
    s_add_u32 s66, s66, s49
    s_mul_i32 s40, s66, s41
    s_lshr_b32 s66, s64, 16
    s_add_u32 s40, s40, s66
    s_lshl_b32 s66, s49, 10
    s_add_u32 m0, s65, s66
    K1_DMAL:
    s_sub_u32 s50, s50, 1
    buffer_load_dwordx4 v6, s[20:23], s40 offen lds
    s_add_u32 m0, m0, 1024
    s_add_u32 s40, s40, s41
    s_cmp_lg_u32 s50, 0
    s_cbranch_scc1 K1_DMAL
    s_setpc_b64 s[42:43]
    """)
    a.L.append(".p2align 4")
    a("K1_TAB:")
    for row in k1_table():
        a.L.append("  .long " + ", ".join("0x%08x" % w for w in row))
    return kdesc("k1_kernel", 252, 72)
if __name__ == "__main__":
    for s, r in enumerate(k1_table()): print(s, [(w & 7, (w >> 8) & 255, (w>>4)&1) if w != 0xFFFFFFFF else None for w in r])
```

```python
from common import *
import math
LAUNCH = "; @launch kernel=k2_kernel grid=(512,1,1) block=(256,1,1) lds=66560"
FLAG = 65536
BIG = 0x7ff00000

def gen_attn(a):
    QA, QB, KA, VA, S0, S1, P, OA, OB, T = 8, 16, 24, 32, 40, 56, 72, 80, 96, 112
    a.c("======== attention ========")
    a(f"""
    s_and_b32 s32, s2, 7
    s_lshl_b32 s32, s32, 1
    s_bfe_u32 s33, s2, 0x10003
    s_add_u32 s32, s32, s33
    s_lshr_b32 s33, s2, 4
    s_lshl_b32 s33, s33, 2
    s_and_b32 s46, s3, 1
    s_lshl_b32 s46, s46, 1
    s_add_u32 s33, s33, s46
    s_lshr_b32 s51, s3, 1
    s_add_u32 s33, s33, s51
    s_lshl_b32 s34, s32, 17
    s_lshl_b32 s35, s33, 11
    s_add_u32 s35, s35, s34
    s_xor_b32 s52, s35, 0x800
    s_lshl_b32 s36, s3, 11
    s_add_u32 s37, s34, s36
    s_add_u32 s37, s37, {KF}
    s_mov_b32 s44, 0x0fffffff
    s_mov_b32 s45, 0x0fffffff
    s_mov_b32 s50, 0
    s_lshl_b32 s53, s51, 12
    s_setprio 2
    s_waitcnt lgkmcnt(0)
    """)
    a.c("s32 head, s33 own q-tile (A), s51 kh, s53 = kh*4096")
    srd(a, 24, 14, WS_BYTES)
    def dmaK(so): a(f"buffer_load_dwordx4 v4, s[24:27], {so} offen lds\nbuffer_load_dwordx4 v4, s[24:27], {so} offen offset:1024 lds")
    def dmaV(so):
        a(f"""
        s_add_u32 m0, m0, 8192
        s_add_u32 s39, {so}, {VF-KF}
        s_mov_b64 exec, s[44:45]
        buffer_load_dwordx4 v4, s[24:27], s39 offen lds
        buffer_load_dwordx4 v4, s[24:27], s39 offen offset:1024 lds
        s_mov_b64 exec, -1
        """)
    a(f"""
    buffer_load_dwordx4 {vr(QA)}, v4, s[24:27], s35 offen
    buffer_load_dwordx4 {vr(QA+4)}, v4, s[24:27], s35 offen offset:1024
    buffer_load_dwordx4 {vr(QB)}, v4, s[24:27], s52 offen
    buffer_load_dwordx4 {vr(QB+4)}, v4, s[24:27], s52 offen offset:1024
    AT_START:
    s_mov_b32 s38, s37
    """)
    for st in range(3):
        a(f"s_add_u32 m0, s36, {st*16384}")
        if st: a("s_add_u32 s38, s38, 8192")
        else: a("s_nop 0")
        dmaK("s38"); dmaV("s38")
    a.c("V pad prefill + flag clear")
    a(f"""
    v_cmp_eq_u32 vcc, 28, v2
    v_mov_b32 v{T}, 0x3f803f80
    v_mov_b32 v{T+4}, s50
    v_cndmask_b32 v{T}, 0, v{T}, vcc
    v_mov_b32 v{T+5}, {FLAG}
    v_mov_b32 v{T+1}, v{T}
    v_mov_b32 v{T+2}, v{T}
    v_mov_b32 v{T+3}, v{T}
    v_add_u32 v5, s36, v4
    ds_write_b32 v{T+5}, v{T+4}
    s_not_b64 exec, s[44:45]
    """)
    for b in range(4):
        for j in range(2): a(f"ds_write_b128 v5, {vr(T)} offset:{b*16384 + 8192 + j*1024}")
    a(f"""
    s_mov_b64 exec, -1
    s_add_u32 s38, s38, 8192
    s_mov_b32 s40, {3*16384}
    s_mov_b32 s41, -1
    """)
    for i in range(32): a(f"v_mov_b32 v{OA+i}, 0")
    for i in range(4): a(f"v_mov_b32 v{P+4+i}, 0\nv_mov_b32 v{VA+4+i}, 0")
    a(f"v_add_u32 v5, s53, v4\nv_add_u32 v6, s53, v4")
    stamp(a)
    a(f"""
    s_waitcnt vmcnt(8) lgkmcnt(0)
    s_barrier
    """)
    stamp(a)
    a(f"""
    s_cmp_lg_u32 s50, 0
    s_cbranch_scc1 AT_HAVEM
    ds_read_b128 {vr(KA)}, v4
    ds_read_b128 {vr(KA+4)}, v4 offset:1024
    s_mov_b32 exec_lo, 0
    v_mov_b32 v{QA+6}, 0
    v_mov_b32 v{QA+7}, 0
    v_mov_b32 v{QB+6}, 0
    v_mov_b32 v{QB+7}, 0
    s_mov_b32 exec_lo, -1
    s_waitcnt lgkmcnt(0)
    s_nop 1
    v_mfma_f32_32x32x16_bf16 {vr(S0,16)}, {vr(KA)}, {vr(QA)}, 0
    v_mfma_f32_32x32x16_bf16 {vr(S1,16)}, {vr(KA)}, {vr(QB)}, 0
    v_mfma_f32_32x32x16_bf16 {vr(S0,16)}, {vr(KA+4)}, {vr(QA+4)}, {vr(S0,16)}
    v_mfma_f32_32x32x16_bf16 {vr(S1,16)}, {vr(KA+4)}, {vr(QB+4)}, {vr(S1,16)}
    s_nop 11
    """)
    for (S, d) in ((S0, T), (S1, T+8)):
        a(f"v_max3_f32 v{d}, v{S}, v{S+1}, v{S+2}")
        for i in range(3, 15, 2): a(f"v_max3_f32 v{d}, v{d}, v{S+i}, v{S+i+1}")
        a(f"v_max_f32 v{d}, v{d}, v{S+15}\nv_add_f32 v{d}, {f32(64.0)}, v{d}")
    a("AT_SETM:")
    for (d, Q) in ((T, QA), (T+8, QB)):
        a(f"""
        v_mov_b32 v{d+1}, v{d}
        s_nop 1
        v_permlane32_swap_b32 v{d}, v{d+1}
        s_nop 1
        v_max_f32 v{d}, v{d}, v{d+1}
        v_sub_f32 v{d}, 0, v{d}
        v_cvt_pk_bf16_f32 v{d+1}, v{d}, v{d}
        v_lshlrev_b32 v{d+2}, 16, v{d+1}
        v_sub_f32 v{d+2}, v{d}, v{d+2}
        v_cvt_pk_bf16_f32 v{d+3}, v{d+2}, v{d+2}
        v_lshlrev_b32 v{d+4}, 16, v{d+3}
        v_sub_f32 v{d+4}, v{d+2}, v{d+4}
        s_mov_b32 exec_lo, 0
        v_cvt_pk_bf16_f32 v{Q+6}, v{d}, v{d+2}
        v_cvt_pk_bf16_f32 v{Q+7}, v{d+4}, 0
        s_mov_b32 exec_lo, -1
        """)
    a(f"""
    s_cmp_eq_u32 s50, 1
    s_cbranch_scc0 AT_HAVEM
    s_mov_b32 s50, 2
    s_branch AT_START
    AT_HAVEM:
    ds_read_b128 {vr(KA)}, v5
    ds_read_b128 {vr(KA+4)}, v5 offset:1024
    ds_read_b128 {vr(VA)}, v5 offset:8192
    s_waitcnt lgkmcnt(0)
    v_mfma_f32_32x32x16_bf16 {vr(S0,16)}, {vr(KA)}, {vr(QA)}, 0
    v_mfma_f32_32x32x16_bf16 {vr(S0,16)}, {vr(KA+4)}, {vr(QA+4)}, {vr(S0,16)}
    s_nop 11
    s_branch AT_U0
    """)
    def e2(S, i): a(f"v_exp_f32 v{S+i}, v{S+i}\nv_exp_f32 v{S+i+1}, v{S+i+1}")
    def c2(S, i, pd): a(f"v_cvt_pk_bf16_f32 v{pd}, v{S+i}, v{S+i+1}\nv_cvt_pk_bf16_f32 v{pd+1}, v{S+i+2}, v{S+i+3}")
    def unit(isA, cur, curoff, nxt, nxtoff, extra=None):
        Sc, Sn = (S0, S1) if isA else (S1, S0)
        Ocur, Oprev = (OA, OB) if isA else (OB, OA)
        Qn = QB if isA else QA
        e2(Sc, 0)
        if not isA: a("s_waitcnt lgkmcnt(0)")
        a(f"v_mfma_f32_32x32x16_bf16 {vr(Oprev,16)}, {vr(VA+4)}, {vr(P+4)}, {vr(Oprev,16)}")
        if isA: a(f"ds_read_b128 {vr(VA+4)}, {cur} offset:{curoff + 8192 + 1024}")
        e2(Sc, 2); c2(Sc, 0, P)
        e2(Sc, 4)
        a(f"v_mfma_f32_32x32x16_bf16 {vr(Sn,16)}, {vr(KA)}, {vr(Qn)}, 0")
        if isA: a(f"ds_read_b128 {vr(KA)}, {nxt} offset:{nxtoff}")
        if extra: extra()
        e2(Sc, 6); c2(Sc, 4, P+2)
        e2(Sc, 8)
        a(f"v_mfma_f32_32x32x16_bf16 {vr(Sn,16)}, {vr(KA+4)}, {vr(Qn+4)}, {vr(Sn,16)}")
        if isA: a(f"ds_read_b128 {vr(KA+4)}, {nxt} offset:{nxtoff + 1024}")
        e2(Sc, 10); c2(Sc, 8, P+4)
        e2(Sc, 12)
        if isA: a("s_waitcnt lgkmcnt(3)")
        a(f"v_mfma_f32_32x32x16_bf16 {vr(Ocur,16)}, {vr(VA)}, {vr(P)}, {vr(Ocur,16)}")
        if not isA: a(f"ds_read_b128 {vr(VA)}, {nxt} offset:{nxtoff + 8192}")
        else: a("s_nop 0")
        e2(Sc, 14); c2(Sc, 12, P+6)
    a("AT_LOOP:")
    stamp(a)
    a(f"""
    s_add_u32 s41, s41, 1
    v_mov_b32 v5, v6
    v_add_u32 v6, 0x4000, v6
    v_and_b32 v6, 0xffff, v6
    s_cmp_lt_u32 s41, 13
    s_cselect_b32 s42, s38, {BIG}
    s_add_u32 m0, s36, s40
    s_add_u32 s38, s38, 8192
    s_add_u32 s40, s40, 0x4000
    s_and_b32 s40, s40, 0xffff
    s_waitcnt vmcnt(4)
    s_barrier
    """)
    stamp(a)
    unit(True, "v5", 2048, "v6", 0, lambda: dmaK("s42"))
    unit(False, "v5", 2048, "v6", 0, lambda: dmaV("s42"))
    a("s_cmp_eq_u32 s41, 15\ns_cbranch_scc1 AT_DONE\nAT_U0:")
    unit(True, "v6", 0, "v6", 2048)
    unit(False, "v6", 0, "v6", 2048)
    a("s_branch AT_LOOP\nAT_DONE:")
    a(f"""
    v_mfma_f32_32x32x16_bf16 {vr(OB,16)}, {vr(VA+4)}, {vr(P+4)}, {vr(OB,16)}
    s_lshl_b32 s46, s3, 12
    v_add_u32 v5, s46, v4
    v_xor_b32 v6, 0x2000, v5
    s_waitcnt vmcnt(0) lgkmcnt(0)
    s_barrier
    s_nop 7
    """)
    for q in range(4): a(f"ds_write_b128 v5, {vr(OB+4*q)} offset:{q*1024}")
    a("s_waitcnt lgkmcnt(0)\ns_barrier")
    for q in range(4): a(f"ds_read_b128 {vr(S0+4*q)}, v6 offset:{q*1024}")
    a("s_waitcnt lgkmcnt(0)")
    O = OA
    for i in range(16): a(f"v_add_f32 v{O+i}, v{O+i}, v{S0+i}")
    a(f"v_max3_f32 v{T}, |v{O}|, |v{O+1}|, |v{O+2}|")
    for i in range(3, 15, 2): a(f"v_max3_f32 v{T}, v{T}, |v{O+i}|, |v{O+i+1}|")
    a(f"""
    v_max_f32 v{T}, v{T}, |v{O+15}|
    v_add_f32 v{T+1}, v{O}, v{O+1}
    """)
    for i in range(2, 16): a(f"v_add_f32 v{T+1}, v{T+1}, v{O+i}")
    a(f"""
    v_mov_b32 v{T+2}, v{O+12}
    v_mov_b32 v{T+3}, v{O+12}
    v_fma_f32 v{T}, v{T+1}, 0, v{T}
    s_nop 0
    v_permlane32_swap_b32 v{T+2}, v{T+3}
    v_mov_b32 v{T+5}, {FLAG}
    v_mov_b32 v{T+6}, 1
    v_cmp_ngt_f32 vcc, {f32(2.0**120)}, v{T}
    s_mov_b64 s[46:47], vcc
    v_cmp_nlt_f32 vcc, {f32(2.0**-110)}, v{T+3}
    s_or_b64 s[46:47], vcc, s[46:47]
    s_cbranch_scc0 AT_OK1
    ds_write_b32 v{T+5}, v{T+6}
    AT_OK1:
    v_rcp_f32 v{T+3}, v{T+3}
    s_mul_i32 s46, s33, {84*1024}
    s_add_u32 s46, s46, {HF}
    s_mul_i32 s47, s32, 7
    v_add_u32 v{T}, s47, v3
    v_lshlrev_b32 v{T+1}, 4, v2
    """)
    for i in range(16): a(f"v_mul_f32 v{O+i}, v{O+i}, v{T+3}")
    for i in range(8): a(f"v_cvt_pk_bf16_f32 v{P+i}, v{O+2*i}, v{O+2*i+1}")
    for g in range(4):
        a(f"""
        v_add_u32 v{T+2}, {2*g}, v{T}
        v_lshrrev_b32 v{T+4}, 1, v{T+2}
        v_lshl_add_u32 v{T+4}, v{T+4}, 9, v{T+1}
        v_and_b32 v{T+2}, 1, v{T+2}
        v_lshl_add_u32 v{T+8+g}, v{T+2}, 3, v{T+4}
        """)
    a(f"""
    s_waitcnt lgkmcnt(0)
    s_barrier
    ds_read_b32 v{T+6}, v{T+5}
    s_waitcnt lgkmcnt(0)
    v_readfirstlane_b32 s47, v{T+6}
    s_cmp_eq_u32 s47, 1
    s_cbranch_scc0 AT_STORE
    s_cmp_eq_u32 s50, 0
    s_cbranch_scc1 AT_SLOW
    AT_STORE:
    """)
    for g in range(4):
        if g == 3: a("s_mov_b32 exec_hi, 0")
        a(f"buffer_store_dwordx2 v[{P+2*g}:{P+2*g+1}], v{T+8+g}, s[24:27], s46 offen")
    stamp(a); stamp(a, True); stamp_flush(a, 1, 4)
    a("s_endpgm")
    a.c("---- slow path: true max over all keys")
    a(f"""
    AT_SLOW:
    s_mov_b32 s50, 1
    s_mov_b32 exec_lo, 0
    v_mov_b32 v{QA+6}, 0
    v_mov_b32 v{QA+7}, 0
    v_mov_b32 v{QB+6}, 0
    v_mov_b32 v{QB+7}, 0
    s_mov_b32 exec_lo, -1
    v_mov_b32 v{T}, 0xff800000
    v_mov_b32 v{T+8}, 0xff800000
    s_mov_b32 s38, s37
    s_mov_b32 s41, 0
    AT_SL1:
    s_barrier
    s_mov_b32 m0, s36
    s_nop 0
    buffer_load_dwordx4 v4, s[24:27], s38 offen lds
    buffer_load_dwordx4 v4, s[24:27], s38 offen offset:1024 lds
    s_add_u32 s38, s38, 8192
    s_waitcnt vmcnt(0)
    s_barrier
    v_mov_b32 v5, v4
    s_mov_b32 s42, 0
    AT_SL2:
    ds_read_b128 {vr(KA)}, v5
    ds_read_b128 {vr(KA+4)}, v5 offset:1024
    v_add_u32 v5, 0x800, v5
    s_waitcnt lgkmcnt(0)
    v_mfma_f32_32x32x16_bf16 {vr(S0,16)}, {vr(KA)}, {vr(QA)}, 0
    v_mfma_f32_32x32x16_bf16 {vr(S1,16)}, {vr(KA)}, {vr(QB)}, 0
    v_mfma_f32_32x32x16_bf16 {vr(S0,16)}, {vr(KA+4)}, {vr(QA+4)}, {vr(S0,16)}
    v_mfma_f32_32x32x16_bf16 {vr(S1,16)}, {vr(KA+4)}, {vr(QB+4)}, {vr(S1,16)}
    s_nop 15
    """)
    for i in range(0, 16, 2): a(f"v_max3_f32 v{T}, v{T}, v{S0+i}, v{S0+i+1}")
    for i in range(0, 16, 2): a(f"v_max3_f32 v{T+8}, v{T+8}, v{S1+i}, v{S1+i+1}")
    a(f"""
    s_add_u32 s42, s42, 1
    s_cmp_lt_u32 s42, 4
    s_cbranch_scc1 AT_SL2
    s_add_u32 s41, s41, 1
    s_cmp_lt_u32 s41, 16
    s_cbranch_scc1 AT_SL1
    s_barrier
    s_branch AT_SETM
    """)

def gen_gemm(a):
    ZA, BF, ACC, Z1R, AD = 16, 144, 160, 224, 240
    BV = 248
    a.c("======== spatial GEMM ========")
    a(f"""
    GM_START:
    s_and_b32 s32, s2, 7
    s_sub_u32 s33, s2, 256
    s_lshr_b32 s33, s33, 3
    s_lshr_b32 s34, s32, 1
    s_lshl_b32 s34, s34, 3
    s_bitcmp1_b32 s32, 0
    s_cbranch_scc1 GM_ODD
    s_lshr_b32 s35, s33, 2
    s_and_b32 s36, s33, 3
    s_branch GM_GO
    GM_ODD:
    s_cmp_ge_u32 s33, 24
    s_cbranch_scc1 TR_START
    s_mul_i32 s35, s33, 43
    s_lshr_b32 s35, s35, 7
    s_mul_i32 s36, s35, 3
    s_sub_u32 s36, s33, s36
    s_add_u32 s36, s36, 4
    GM_GO:
    s_add_u32 s35, s35, s34
    s_lshr_b32 s37, s3, 1
    s_and_b32 s38, s3, 1
    """)
    a.c("s35=tt64 s36=ft s37=kh s38=fh ; s39 = fb0")
    a(f"""
    s_lshl_b32 s39, s36, 2
    s_lshl_b32 s46, s38, 1
    s_add_u32 s39, s39, s46
    s_mul_i32 s40, s37, {4*28}
    s_add_u32 s40, s40, s39
    s_lshl_b32 s40, s40, 10
    s_add_u32 s40, s40, {Z2F}
    s_lshl_b32 s41, s35, 18
    s_lshl_b32 s46, s3, 2
    v_lshrrev_b32 v5, 4, v1
    v_add_u32 v5, s46, v5
    v_and_b32 v6, 15, v1
    v_xor_b32 v6, v6, v5
    v_lshlrev_b32 v6, 4, v6
    v_lshl_add_u32 v5, v5, 12, v6
    s_lshl_b32 s42, s3, 10
    """)
    a.c("B frag read addrs: a0 = t*256 + ((8kh+h)^(t&15))*16 ; u=0: +8192*kh ; u=1: +8192*(1-kh)")
    a(f"""
    s_lshl_b32 s46, s37, 3
    v_add_u32 v6, s46, v3
    v_and_b32 v7, 15, v2
    v_xor_b32 v6, v6, v7
    v_lshlrev_b32 v6, 4, v6
    v_lshl_add_u32 v6, v2, 8, v6
    s_lshl_b32 s46, s37, 13
    v_add_u32 v{AD}, s46, v6
    v_xor_b32 v{AD+1}, 32, v{AD}
    v_xor_b32 v{AD+2}, 64, v{AD}
    v_xor_b32 v{AD+3}, 0x60, v{AD}
    """)
    for j in range(4): a(f"v_xor_b32 v{AD+4+j}, 0x2000, v{AD+j}")
    a("s_waitcnt lgkmcnt(0)")
    srd(a, 24, 14, WS_BYTES)
    srd(a, 16, 4, 2048*2048*2)
    srd(a, 20, 6, 2048*2)
    a.c("z1 + bias loads")
    a(f"""
    s_lshl_b32 s43, s35, 1
    s_add_u32 s43, s43, s37
    s_mul_i32 s46, s43, 28
    s_add_u32 s46, s46, s39
    s_lshl_b32 s46, s46, 11
    s_add_u32 s46, s46, {Z1}
    s_lshl_b32 s47, s43, 6
    v_lshlrev_b32 v7, 1, v2
    """)
    a("s_mov_b32 s50, s46\ns_mov_b32 s51, s47")
    def dmaw(st_set, wreg, q):
        if q == 0: a(f"s_add_u32 m0, s42, {st_set*16384}\ns_mov_b32 s46, {wreg}")
        else: a("s_add_u32 m0, m0, 4096\ns_add_u32 s46, s46, 0x10000")
        a(f"buffer_load_dwordx4 v5, s[16:19], s46 offen lds")
    def ldz(st_set, zreg, i):
        jj, fb = i // 2, i % 2
        z = ZA + st_set*32 + jj*8 + 4*fb
        if i == 0: a(f"s_mov_b32 s47, {zreg}")
        elif fb == 0: a(f"s_add_u32 s47, s47, {28*1024}")
        a(f"buffer_load_dwordx4 {vr(z)}, v4, s[24:27], s47 offen offset:{fb*1024}")
    for st in range(3):
        for i in range(8): ldz(st, "s40", i)
        for q in range(4): dmaw(st, "s41", q)
        a(f"s_add_u32 s41, s41, 256\ns_add_u32 s40, s40, {8*28*1024}")
    for i in range(64): a(f"v_mov_b32 v{ACC+i}, 0")
    a("s_mov_b32 s44, 0")
    stamp(a)
    a("s_waitcnt vmcnt(24)\ns_barrier")
    stamp(a)
    a(f"""
    ds_read_b128 {vr(BF)}, v{AD}
    ds_read_b128 {vr(BF+4)}, v{AD+4}
    GM_LOOP:
    """)
    for st in range(4):
        a(f"""
        s_cmp_lt_u32 s44, {13 - st}
        s_cselect_b32 s48, s41, {BIG}
        s_cselect_b32 s49, s40, {BIG}
        s_add_u32 s41, s41, 256
        s_add_u32 s40, s40, {8*28*1024}
        """)
        zi = 0
        for jj in range(4):
            cur = BF + 8*(jj & 1); nxt = BF + 8*((jj+1) & 1)
            if jj == 3:
                stamp(a)
                a("s_waitcnt vmcnt(20)\ns_barrier")
                stamp(a)
                nb = ((st+1) % 4)*16384
                a(f"ds_read_b128 {vr(nxt)}, v{AD} offset:{nb}\nds_read_b128 {vr(nxt+4)}, v{AD+4} offset:{nb}")
            else:
                a(f"ds_read_b128 {vr(nxt)}, v{AD+jj+1} offset:{st*16384}\nds_read_b128 {vr(nxt+4)}, v{AD+4+jj+1} offset:{st*16384}")
            a("s_waitcnt lgkmcnt(2)")
            z = ZA + st*32 + jj*8
            m = 0
            for u in range(2):
                for fb in range(2):
                    ac = vr(ACC + 32*u + 16*fb, 16)
                    a(f"v_mfma_f32_32x32x16_bf16 {ac}, {vr(z+4*fb)}, {vr(cur+4*u)}, {ac}")
                    if jj == 3: dmaw((st+3) % 4, "s48", m)
                    elif zi < 8 and m != 3:
                        ldz((st+3) % 4, "s49", zi); zi += 1
                    m += 1
    a(f"""
    s_add_u32 s44, s44, 4
    s_cmp_lg_u32 s44, 12
    s_cbranch_scc1 GM_NOZ
    buffer_load_dwordx4 {vr(Z1R)}, v4, s[24:27], s50 offen
    buffer_load_dwordx4 {vr(Z1R+4)}, v4, s[24:27], s50 offen offset:1024
    buffer_load_dwordx4 {vr(Z1R+8)}, v4, s[24:27], s50 offen offset:2048
    buffer_load_dwordx4 {vr(Z1R+12)}, v4, s[24:27], s50 offen offset:3072
    buffer_load_ushort v{BV}, v7, s[20:23], s51 offen
    GM_NOZ:
    s_cmp_lt_u32 s44, 16
    s_cbranch_scc1 GM_LOOP
    s_waitcnt vmcnt(0) lgkmcnt(0)
    s_barrier
    s_lshl_b32 s46, s3, 13
    v_add_u32 v5, s46, v4
    v_xor_b32 v6, 0x4000, v5
    s_nop 7
    """)
    for q in range(8): a(f"ds_write_b128 v5, {vr(ACC+32+4*q)} offset:{q*1024}")
    a("s_waitcnt lgkmcnt(0)\ns_barrier")
    for q in range(8): a(f"ds_read_b128 {vr(ZA+4*q)}, v6 offset:{q*1024}")
    a(f"""
    v_lshlrev_b32 v{BV}, 16, v{BV}
    v_mov_b32 v{BV+1}, v{BV}
    s_mul_i32 s46, s43, 84
    s_lshl_b32 s47, s39, 1
    s_add_u32 s46, s46, s47
    s_lshl_b32 s46, s46, 10
    s_add_u32 s46, s46, {HF + 28*1024}
    """)
    U = ZA + 64
    for i in range(16):
        a(f"v_lshlrev_b32 v{U+2*i}, 16, v{Z1R+i}\nv_and_b32 v{U+2*i+1}, 0xffff0000, v{Z1R+i}")
    for i in range(32): a(f"v_add_f32 v{ACC+i}, v{ACC+i}, v{BV}")
    a("s_waitcnt lgkmcnt(0)")
    for i in range(32): a(f"v_add_f32 v{ACC+i}, v{ACC+i}, v{ZA+i}")
    for i in range(32): a(f"v_mul_f32 v{ACC+i}, v{ACC+i}, v{U+i}")
    for i in range(16): a(f"v_cvt_pk_bf16_f32 v{ZA+i}, v{ACC+2*i}, v{ACC+2*i+1}")
    a("s_nop 1")
    for q in range(4):
        a(f"v_permlane32_swap_b32 v{ZA+4*q}, v{ZA+4*q+2}\nv_permlane32_swap_b32 v{ZA+4*q+1}, v{ZA+4*q+3}")
    a("s_nop 1")
    for q in range(4): a(f"buffer_store_dwordx4 {vr(ZA+4*q)}, v4, s[24:27], s46 offen offset:{q*1024}")
    stamp(a); stamp(a, True); stamp_flush(a, 1, 4)
    a("s_endpgm")

def gen_tr(a):
    a.c("======== W transposer: n = s34 + s33 - 24 ; ksteps n, n+32, n+64")
    a(f"""
    TR_START:
    s_add_u32 s35, s34, s33
    s_sub_u32 s35, s35, 24
    s_waitcnt lgkmcnt(0)
    """)
    srd(a, 24, 14, WS_BYTES)
    a(f"""
    v_bfe_u32 v5, v1, 2, 2
    v_lshl_add_u32 v5, v3, 3, v5
    v_mul_u32_u24 v5, 896, v5
    v_bfe_u32 v6, v1, 4, 1
    v_lshl_add_u32 v5, v6, 5, v5
    v_and_b32 v6, 3, v1
    v_lshl_add_u32 v5, v6, 3, v5
    s_lshl_b32 s46, s3, 6
    v_add_u32 v5, s46, v5
    s_mov_b32 s19, 0x00020000
    TR_L0:
    s_cmp_lt_u32 s35, 28
    s_cselect_b32 s16, s8, s10
    s_cselect_b32 s17, s9, s11
    s_mov_b32 s18, {896*448*2}
    s_cselect_b32 s18, {448*448*2}, s18
    s_cselect_b32 s46, 0, 28
    s_and_b32 s17, s17, 0xffff
    s_sub_u32 s46, s35, s46
    s_mul_i32 s46, s46, 14336
    s_lshl_b32 s47, s3, 10
    s_add_u32 s46, s46, s47
    s_mov_b32 m0, s47
    s_mov_b32 s48, s3
    s_barrier
    TR_L1:
    buffer_load_dwordx4 v4, s[16:19], s46 offen lds
    s_add_u32 m0, m0, 4096
    s_add_u32 s46, s46, 4096
    s_add_u32 s48, s48, 4
    s_cmp_lt_u32 s48, 14
    s_cbranch_scc1 TR_L1
    s_waitcnt vmcnt(0)
    s_barrier
    s_mul_i32 s46, s35, 14
    s_add_u32 s46, s46, s3
    s_lshl_b32 s46, s46, 10
    s_add_u32 s46, s46, {WF}
    s_mov_b32 s48, s3
    v_mov_b32 v6, v5
    TR_L2:
    ds_read_b64_tr_b16 v[8:9], v6
    ds_read_b64_tr_b16 v[10:11], v6 offset:3584
    v_add_u32 v6, 0x100, v6
    s_waitcnt lgkmcnt(0)
    buffer_store_dwordx4 v[8:11], v4, s[24:27], s46 offen
    s_add_u32 s46, s46, 4096
    s_add_u32 s48, s48, 4
    s_cmp_lt_u32 s48, 14
    s_cbranch_scc1 TR_L2
    s_add_u32 s35, s35, 32
    s_cmp_lt_u32 s35, 84
    s_cbranch_scc1 TR_L0
    """)
    stamp(a); stamp(a, True); stamp_flush(a, 1, 4)
    a("s_endpgm")

def gen_k2(a):
    khead(a, "k2_kernel")
    a(f"""
    s_cmp_ge_u32 s2, 512
    s_cbranch_scc1 K2_END
    s_load_dwordx4 s[4:7], s[0:1], 40
    s_load_dwordx2 s[8:9], s[0:1], 16
    s_load_dwordx2 s[10:11], s[0:1], 56
    s_load_dwordx2 s[14:15], s[0:1], 80
    v_lshrrev_b32 v1, 6, v0
    v_and_b32 v2, 31, v0
    v_readfirstlane_b32 s3, v1
    v_and_b32 v1, 63, v0
    v_bfe_u32 v3, v0, 5, 1
    v_lshlrev_b32 v4, 4, v1
    """)
    stamp_init(a); stamp(a, True); stamp(a)
    a("s_cmp_ge_u32 s2, 256\ns_cbranch_scc1 GM_START")
    gen_attn(a)
    gen_gemm(a)
    gen_tr(a)
    a("K2_END:\ns_endpgm")
    return kdesc("k2_kernel", 252, 56)
```

```python
from common import *
LAUNCH = "; @launch kernel=k3_kernel grid=(224,1,1) block=(256,1,1) lds=69632"
ROWB = 272; REG = 64*ROWB
def gen_k3(a):
    ACC, RB, D = 192, 0, 12
    RB = 8; D = 11 if not STAMPS else 10
    ACC = 184; XR = 248 if not STAMPS else 168
    khead(a, "k3_kernel")
    a(f"""
    s_cmp_ge_u32 s2, 224
    s_cbranch_scc1 K3_END
    s_load_dwordx2 s[4:5], s[0:1], 0
    s_load_dwordx2 s[6:7], s[0:1], 64
    s_load_dwordx2 s[14:15], s[0:1], 80
    v_lshrrev_b32 v1, 6, v0
    v_and_b32 v2, 31, v0
    v_readfirstlane_b32 s3, v1
    v_and_b32 v1, 63, v0
    v_bfe_u32 v3, v0, 5, 1
    v_lshlrev_b32 v4, 4, v1
    s_and_b32 s32, s2, 7
    s_lshr_b32 s33, s2, 3
    s_mul_i32 s34, s33, 37
    s_lshr_b32 s34, s34, 8
    s_mul_i32 s35, s34, 7
    s_sub_u32 s35, s33, s35
    s_lshl_b32 s32, s32, 2
    s_add_u32 s34, s34, s32
    """)
    stamp_init(a); stamp(a, True); stamp(a)
    a.c("s34=tt64 s35=nt ; s40=A0 off, s41=A1 off, s42=W off")
    a(f"""
    s_mul_i32 s40, s34, 168
    s_mul_i32 s46, s3, 21
    s_add_u32 s40, s40, s46
    s_lshl_b32 s40, s40, 10
    s_add_u32 s40, s40, {HF}
    s_add_u32 s41, s40, {84*1024}
    s_mul_i32 s42, s46, 14
    s_lshl_b32 s47, s35, 1
    s_add_u32 s42, s42, s47
    s_lshl_b32 s42, s42, 10
    s_add_u32 s42, s42, {WF}
    v_lshrrev_b32 v5, 2, v0
    v_and_b32 v6, 3, v0
    v_mul_u32_u24 v7, 896, v5
    v_lshl_add_u32 v7, v6, 5, v7
    s_mul_i32 s43, s34, {64*896}
    s_lshl_b32 s47, s35, 7
    s_add_u32 s43, s43, s47
    s_waitcnt lgkmcnt(0)
    """)
    srd(a, 24, 14, WS_BYTES)
    srd(a, 16, 4, 2048*448*2)
    srd(a, 20, 6, 2048*448*2)
    a(f"buffer_load_dwordx4 {vr(XR)}, v7, s[16:19], s43 offen\nbuffer_load_dwordx4 {vr(XR+4)}, v7, s[16:19], s43 offen offset:16")
    def ld(i):
        r = RB + 16*(i % D)
        o = (i % 4)*1024
        a(f"buffer_load_dwordx4 {vr(r)}, v4, s[24:27], s42 offen")
        a(f"buffer_load_dwordx4 {vr(r+4)}, v4, s[24:27], s42 offen offset:1024")
        a(f"buffer_load_dwordx4 {vr(r+8)}, v4, s[24:27], s40 offen offset:{o}")
        a(f"buffer_load_dwordx4 {vr(r+12)}, v4, s[24:27], s41 offen offset:{o}")
        a(f"s_add_u32 s42, s42, {14*1024}")
        if i % 4 == 3: a("s_add_u32 s40, s40, 4096\ns_add_u32 s41, s41, 4096")
    for i in range(D-1): ld(i)
    for i in range(21):
        nxt = i + D - 1
        if nxt < 21: ld(nxt)
        out = min(21, i + D) - (i + 1)
        if i % 4 == 0: stamp(a)
        a(f"s_waitcnt vmcnt({4*out})")
        r = RB + 16*(i % D)
        for tb in range(2):
            for nb in range(2):
                ac = vr(ACC + 32*tb + 16*nb, 16)
                c = "0" if i == 0 else ac
                a(f"v_mfma_f32_32x32x16_bf16 {ac}, {vr(r+4*nb)}, {vr(r+8+4*tb)}, {c}")
    stamp(a)
    a.c("write partials [t][n] fp32, row 272B")
    a(f"""
    s_mul_i32 s46, s3, {REG}
    v_mul_u32_u24 v8, {ROWB}, v2
    v_lshl_add_u32 v8, v3, 4, v8
    v_add_u32 v8, s46, v8
    v_mul_u32_u24 v9, {ROWB}, v5
    v_lshl_add_u32 v9, v6, 6, v9
    s_nop 7
    s_nop 3
    """)
    for tb in range(2):
        for nb in range(2):
            for g in range(4):
                a(f"ds_write_b128 v8, {vr(ACC+32*tb+16*nb+4*g)} offset:{tb*32*ROWB + nb*128 + g*32}")
    a("s_waitcnt lgkmcnt(0)\ns_barrier")
    for w in range(4):
        for i in range(4):
            a(f"ds_read_b128 {vr(16+16*w+4*i)}, v9 offset:{w*REG + 16*i}")
    for i in range(8):
        a(f"v_lshlrev_b32 v{96+2*i}, 16, v{XR+i}\nv_and_b32 v{97+2*i}, 0xffff0000, v{XR+i}")
    for w in range(4):
        a(f"s_waitcnt lgkmcnt({12-4*w})")
        for i in range(0, 16, 2): a(f"v_pk_add_f32 v[{96+i}:{97+i}], v[{96+i}:{97+i}], v[{16+16*w+i}:{17+16*w+i}]")
    for i in range(8): a(f"v_cvt_pk_bf16_f32 v{112+i}, v{96+2*i}, v{97+2*i}")
    a(f"""
    buffer_store_dwordx4 v[112:115], v7, s[20:23], s43 offen
    buffer_store_dwordx4 v[116:119], v7, s[20:23], s43 offen offset:16
    """)
    stamp(a); stamp(a, True); stamp_flush(a, 2, 4)
    a("K3_END:\ns_endpgm")
    return kdesc("k3_kernel", 256, 56)
```
